```python
import torch

def _softmax(x, axis=-1):
    return torch.softmax(x, dim=axis)
def _gelu(x):
    return torch.nn.functional.gelu(x, approximate="tanh")
def _silu(x):
    return torch.nn.functional.silu(x)
def _sigmoid(x):
    return torch.sigmoid(x)
def _layernorm(x, axis=-1, eps=1e-5):
    m = x.mean(dim=axis, keepdim=True)
    v = x.var(dim=axis, keepdim=True, unbiased=False)
    return (x - m) / torch.sqrt(v + eps)
def _scatter_add(tgt, idx, src, axis=0):
    return tgt.clone().index_add_(axis, idx, src)
def _segment_sum(src, seg, n):
    out = torch.zeros((n,) + src.shape[1:], dtype=src.dtype)
    return out.index_add_(0, seg, src)
def _pad(x, pw):
    flat = tuple(v for pair in reversed(pw) for v in pair)
    return torch.nn.functional.pad(x, flat)

kernel_name = 'interleave_layers__ssm_conv_s4__sliding_block__prompt'

def setup_inputs():

    _w = (lambda a: (lambda t: t.to(torch.bfloat16) if t.is_floating_point() else t)(torch.as_tensor(a)))
    def _A_setup():
        B, L, D, N = 1, 2048, 512, 128
        A_re = -(lambda _x: torch.exp(torch.as_tensor(_x)))((lambda *s: torch.randn(*s, dtype=torch.bfloat16) * 1.6)(D, N))
        A_im = torch.pi * (lambda *s: torch.randn(*s, dtype=torch.bfloat16) * 0.05)(D, N)
        B_re = (lambda *s: torch.randn(*s, dtype=torch.bfloat16) * 0.05)(D, N)
        B_im = (lambda *s: torch.randn(*s, dtype=torch.bfloat16) * 0.05)(D, N)
        C_re = (lambda *s: torch.randn(*s, dtype=torch.bfloat16) * 0.05)(D, N)
        C_im = (lambda *s: torch.randn(*s, dtype=torch.bfloat16) * 0.05)(D, N)
        log_dt = (lambda *s: torch.randn(*s, dtype=torch.bfloat16) * 0.05)(D) * 0.5 - 4.0
        Dskip = (lambda *s: torch.randn(*s, dtype=torch.bfloat16) * 0.05)(D)
        return {
            "u": _w((lambda *s: torch.randn(*s, dtype=torch.bfloat16) * 0.05)(B, L, D)),
            "A_re": _w(A_re),
            "A_im": _w(A_im),
            "B_re": _w(B_re),
            "B_im": _w(B_im),
            "C_re": _w(C_re),
            "C_im": _w(C_im),
            "log_dt": _w(log_dt),
            "Dskip": _w(Dskip),
        }
    _A_in = _A_setup()

    def _B_setup():
        B, S, D = 1, 2048, 512
        return {
            "x": _w((lambda *s: torch.randn(*s, dtype=torch.bfloat16) * 0.05)(B, S, D)),
            "wqkv": _w((lambda *s: torch.randn(*s, dtype=torch.bfloat16) * 0.05)(D, 3 * D)),
            "wo": _w((lambda *s: torch.randn(*s, dtype=torch.bfloat16) * 0.05)(D, D)),
        }
    _B_in = _B_setup()

    return {
        "A_u": _A_in["u"],
        "A_A_re": _A_in["A_re"],
        "A_A_im": _A_in["A_im"],
        "A_B_re": _A_in["B_re"],
        "A_B_im": _A_in["B_im"],
        "A_C_re": _A_in["C_re"],
        "A_C_im": _A_in["C_im"],
        "A_log_dt": _A_in["log_dt"],
        "A_Dskip": _A_in["Dskip"],
        "B_x": _B_in["x"],
        "B_wqkv": _B_in["wqkv"],
        "B_wo": _B_in["wo"],
    }

def reference(A_u, A_A_re, A_A_im, A_B_re, A_B_im, A_C_re, A_C_im, A_log_dt, A_Dskip, B_x, B_wqkv, B_wo):
    def _A_ref(u, A_re, A_im, B_re, B_im, C_re, C_im, log_dt, Dskip):
        Bsz, L, D = u.shape
        dt = torch.exp(log_dt)[:, None]
        A = A_re + 1j * A_im
        Bc = B_re + 1j * B_im
        Cc = C_re + 1j * C_im
        logdA = dt * A
        dB = dt * Bc
        l = (lambda x, dt: x.to(dt))(torch.arange(L), A_re.dtype)
        P = torch.exp(logdA[:, :, None] * l[None, None, :])
        K = torch.einsum("dn,dnl,dn->dl", Cc, P, dB).real
        L2 = 2 * L
        Kp = _pad(K, ((0, 0), (0, L)))
        up = (lambda x, *d: x.permute(*d))(u, 0, 2, 1)
        up = _pad(up, ((0, 0), (0, 0), (0, L)))
        Kf = (lambda x, axes=(-2,-1): torch.fft.rfft2(x.float(), dim=axes))(Kp[:, None, :], axes=(-2, -1))
        Uf = (lambda x, axes=(-2,-1): torch.fft.rfft2(x.float(), dim=axes))(up[:, :, None, :], axes=(-2, -1))
        Yf = Uf * Kf[None, :, :, :]
        y = (lambda x, s, axes=(-2,-1): torch.fft.irfft2(x, s=s, dim=axes).to(torch.bfloat16))(Yf, (1, L2), axes=(-2, -1))[:, :, 0, :L]
        y = (lambda x, *d: x.permute(*d))(y, 0, 2, 1) + u * Dskip[None, None, :]
        return y

    def _B_ref(x, wqkv, wo):
        B, S, D = x.shape
        H = 32; Dh = D // H; W = 256
        qkv = (lambda x, *d: x.permute(*d))((x @ wqkv).reshape(B, S, 3, H, Dh), 2, 0, 3, 1, 4)
        q, k, v = qkv[0], qkv[1], qkv[2]
        scores = torch.einsum("bhqd,bhkd->bhqk", q, k) * (Dh ** -0.5)
        idx = torch.arange(S)
        mask = (idx[:, None] - idx[None, :] >= 0) & (idx[:, None] - idx[None, :] < W)
        scores = torch.where(mask[None, None], scores, -1e9)
        p = _softmax(scores, axis=-1)
        o = torch.einsum("bhqk,bhkd->bhqd", p, v)
        return (lambda x, *d: x.permute(*d))(o, 0, 2, 1, 3).reshape(B, S, D) @ wo

    x = A_u
    x = x + _A_ref(_layernorm(x, axis=-1), A_A_re, A_A_im, A_B_re, A_B_im, A_C_re, A_C_im, A_log_dt, A_Dskip)
    x = x + _B_ref(_layernorm(x, axis=-1), B_wqkv, B_wo)
    x = x + _A_ref(_layernorm(x, axis=-1), A_A_re, A_A_im, A_B_re, A_B_im, A_C_re, A_C_im, A_log_dt, A_Dskip)
    x = x + _B_ref(_layernorm(x, axis=-1), B_wqkv, B_wo)
    return x
```

```python
MB=1<<20
XT=[0,2*MB,4*MB,6*MB]; STATS=[8*MB,8*MB+65536]; KBUF=9*MB; WQT=13*MB; WOT=15*MB
QB=16*MB; KB=18*MB; VT=20*MB; OB=22*MB; WSZ=24*MB
class G:
    def __init__(s): s.o=[]
    def __call__(s,x):
        for l in x.strip('\n').split('\n'): s.o.append('    '+l.strip())
    def lab(s,l): s.o.append(l+':')
def srd(g,d,slot,nbytes):
    g(f"s_load_dwordx2 s[{d}:{d+1}], s[0:1], {slot*8}")
    g(f"s_mov_b32 s{d+2}, {nbytes}\ns_mov_b32 s{d+3}, 0x00020000")
def khead(g,name):
    g.o.append(f".globl {name}\n.p2align 8\n.type {name},@function\n{name}:")
def kdesc(name,vg,ag=0):
    acc=(vg+3)//4*4
    tot=acc+ag if ag else vg
    return f""".section .rodata,"a"
.p2align 6
.amdhsa_kernel {name}
  .amdhsa_next_free_vgpr {tot}
  .amdhsa_next_free_sgpr 96
  .amdhsa_accum_offset {acc}
  .amdhsa_group_segment_fixed_size 0
  .amdhsa_kernarg_size 120
  .amdhsa_user_sgpr_count 2
  .amdhsa_user_sgpr_kernarg_segment_ptr 1
  .amdhsa_system_sgpr_workgroup_id_x 1
.end_amdhsa_kernel
.text
"""
def transp8(g,inb,outb,slo,shi):
    for c in range(8):
        for j in range(4):
            g(f"v_perm_b32 v{outb+4*c+j}, v{inb+4*(2*j+1)+(c>>1)}, v{inb+4*(2*j)+(c>>1)}, s{shi if c&1 else slo}")
def cexp(g,dr,di,ar,ai,L,t0,t1,sl2e,s2pi,sL):
    g(f"s_mov_b32 s{sL}, {float(L)!r}")
    g(f"v_mul_f32 v{t0}, s{sL}, v{ar}\nv_mul_f32 v{t1}, s{sL}, v{ai}")
    g(f"v_mul_f32 v{t0}, s{sl2e}, v{t0}\nv_mul_f32 v{t1}, s{s2pi}, v{t1}")
    g(f"v_exp_f32 v{t0}, v{t0}\nv_fract_f32 v{t1}, v{t1}\ns_nop 0")
    g(f"v_cos_f32 v{dr}, v{t1}\nv_sin_f32 v{di}, v{t1}\ns_nop 0")
    g(f"v_mul_f32 v{dr}, v{dr}, v{t0}\nv_mul_f32 v{di}, v{di}, v{t0}")
def cmul(g,dr,di,ar,ai,br,bi,t):
    g(f"v_mul_f32 v{t}, v{ai}, v{bi}\nv_mul_f32 v{t+1}, v{ai}, v{br}")
    g(f"v_fma_f32 v{t}, v{ar}, v{br}, -v{t}\nv_fma_f32 v{di}, v{ar}, v{bi}, v{t+1}\nv_mov_b32 v{dr}, v{t}")

def prep(g):
    khead(g,"prep_kernel")
    srd(g,8,14,WSZ)
    g("s_mov_b32 s20, 0x05040100\ns_mov_b32 s21, 0x07060302")
    g("v_lshrrev_b32 v1, 6, v0\nv_and_b32 v2, 63, v0")
    g("s_cmp_lt_u32 s2, 256\ns_cbranch_scc1 L_kgen")
    g("s_cmp_lt_u32 s2, 320\ns_cbranch_scc1 L_xt")
    g("s_cmp_lt_u32 s2, 384\ns_cbranch_scc0 L_prep_end")
    g("s_sub_u32 s3, s2, 320\ns_cmp_lt_u32 s3, 48\ns_cbranch_scc0 L_wo")
    srd(g,12,10,512*1536*2)
    g(f"s_mov_b32 s22, 3072\ns_mov_b32 s23, {WQT}\ns_mul_i32 s24, s3, 21846\ns_lshr_b32 s24, s24, 16")
    g("s_lshr_b32 s24, s24, 2\ns_mul_i32 s25, s24, 12\ns_sub_u32 s25, s3, s25\ns_branch L_wt")
    g.lab("L_wo")
    srd(g,12,11,512*512*2)
    g(f"s_sub_u32 s3, s3, 48\ns_mov_b32 s22, 1024\ns_mov_b32 s23, {WOT}\ns_lshr_b32 s24, s3, 2\ns_and_b32 s25, s3, 3")
    g.lab("L_wt")
    g("s_waitcnt lgkmcnt(0)")
    g("v_and_b32 v3, 15, v0\nv_lshrrev_b32 v4, 4, v0")
    g("s_lshl_b32 s26, s24, 7\ns_lshl_b32 s27, s25, 7")
    g("v_lshlrev_b32 v5, 3, v4\nv_add_u32 v5, s26, v5")
    g("v_lshlrev_b32 v6, 3, v3\nv_add_u32 v6, s27, v6")
    g("v_mul_lo_u32 v7, v5, s22\nv_lshl_add_u32 v7, v6, 1, v7")
    for i in range(8):
        g(f"buffer_load_dwordx4 v[{16+4*i}:{19+4*i}], v7, s[12:15], 0 offen\nv_add_u32 v7, s22, v7")
    g("v_lshlrev_b32 v8, 10, v6\nv_lshl_add_u32 v8, v5, 1, v8\ns_waitcnt vmcnt(0)")
    transp8(g,16,48,20,21)
    for c in range(8):
        if c==4: g("v_add_u32 v8, 4096, v8")
        g(f"buffer_store_dwordx4 v[{48+4*c}:{51+4*c}], v8, s[8:11], s23 offen offset:{(c&3)*1024}")
    g("s_branch L_prep_end")
    g.lab("L_xt")
    srd(g,12,0,2048*512*2)
    g("s_sub_u32 s3, s2, 256\ns_lshl_b32 s3, s3, 5\ns_waitcnt lgkmcnt(0)")
    g("v_lshlrev_b32 v3, 3, v1\nv_add_u32 v3, s3, v3")
    g("v_lshlrev_b32 v4, 10, v3\nv_lshl_add_u32 v4, v2, 4, v4")
    for i in range(8):
        if i==4: g("v_add_u32 v4, 4096, v4")
        g(f"buffer_load_dwordx4 v[{16+4*i}:{19+4*i}], v4, s[12:15], 0 offen offset:{(i&3)*1024}")
    g("v_lshlrev_b32 v5, 15, v2\nv_lshl_add_u32 v5, v3, 1, v5\ns_waitcnt vmcnt(0)")
    transp8(g,16,48,20,21)
    for c in range(8):
        g(f"buffer_store_dwordx4 v[{48+4*c}:{51+4*c}], v5, s[8:11], 0 offen\nv_add_u32 v5, 4096, v5")
    for i in range(8):
        g(f"v_mov_b32 v{80+i}, 0\nv_mov_b32 v{88+i}, 0")
        for j in range(4):
            r=16+4*i+j
            g(f"v_lshlrev_b32 v6, 16, v{r}\nv_and_b32 v7, 0xffff0000, v{r}")
            g(f"v_add_f32 v{80+i}, v{80+i}, v6\nv_fmac_f32 v{88+i}, v6, v6\nv_add_f32 v{80+i}, v{80+i}, v7\nv_fmac_f32 v{88+i}, v7, v7")
    for md in ["row_shr:1 row_mask:0xf","row_shr:2 row_mask:0xf","row_shr:4 row_mask:0xf","row_shr:8 row_mask:0xf","row_bcast:15 row_mask:0xa","row_bcast:31 row_mask:0xc"]:
        for i in range(16):
            g(f"v_add_f32_dpp v{80+i}, v{80+i}, v{80+i} {md} bank_mask:0xf bound_ctrl:0")
    g("v_lshlrev_b32 v5, 3, v3\nv_mov_b32 v8, 0\nv_mov_b32 v9, 0\nv_cmp_eq_u32 vcc, 63, v2\ns_and_saveexec_b64 s[30:31], vcc")
    g(f"s_mov_b32 s23, {STATS[0]}")
    for i in range(8):
        g(f"v_mov_b32 v6, v{80+i}\nv_mov_b32 v7, v{88+i}")
        g(f"buffer_store_dwordx2 v[6:7], v5, s[8:11], s23 offen offset:{i*8}")
        g(f"v_add_u32 v10, 16384, v5\nbuffer_store_dwordx2 v[8:9], v10, s[8:11], s23 offen offset:{i*8}\ns_nop 1")
    g("s_branch L_prep_end")
    g.lab("L_kgen")
    for k in range(6): srd(g,32+4*k,1+k,512*128*2)
    srd(g,56,7,1024)
    g("s_mov_b32 s24, 0x3fb8aa3b\ns_mov_b32 s25, 0x3e22f983")
    g("v_lshrrev_b32 v3, 1, v1\nv_lshl_add_u32 v3, s2, 1, v3")
    g("v_and_b32 v4, 1, v1\nv_lshl_add_u32 v5, v4, 6, v2")
    g("v_lshl_add_u32 v6, v3, 7, v5\nv_lshlrev_b32 v6, 1, v6\nv_lshlrev_b32 v7, 1, v3\ns_waitcnt lgkmcnt(0)")
    for k in range(6): g(f"buffer_load_ushort v{10+k}, v6, s[{32+4*k}:{35+4*k}], 0 offen")
    g("buffer_load_ushort v16, v7, s[56:59], 0 offen\ns_waitcnt vmcnt(0)")
    for k in range(7): g(f"v_lshlrev_b32 v{10+k}, 16, v{10+k}")
    g("v_mul_f32 v16, s24, v16\nv_exp_f32 v16, v16\ns_nop 0\nv_cvt_pk_bf16_f32 v16, v16, v16\nv_lshlrev_b32 v16, 16, v16")
    g("v_mul_f32 v10, v16, v10\nv_mul_f32 v11, v16, v11\nv_mul_f32 v12, v16, v12\nv_mul_f32 v13, v16, v13")
    cmul(g,17,18,14,15,12,13,20)
    g("s_mov_b32 s26, 16896\nv_mul_lo_u32 v8, v1, s26\nv_lshl_add_u32 v9, v2, 3, v8")
    g("v_and_b32 v22, 15, v2\nv_lshrrev_b32 v23, 4, v2\ns_mov_b32 s26, 528\nv_mul_lo_u32 v24, v22, s26\nv_lshl_add_u32 v24, v23, 4, v24\nv_add_u32 v24, v8, v24")
    for R,(base,st) in enumerate([(0,1),(256,2),(512,4),(1024,8)]):
        cexp(g,30,31,10,11,st,20,21,24,25,26)
        cexp(g,32,33,10,11,16*st,20,21,24,25,26)
        if base==0: g("v_mov_b32 v34, v17\nv_mov_b32 v35, v18")
        else:
            cexp(g,36,37,10,11,base,20,21,24,25,26)
            cmul(g,34,35,17,18,36,37,20)
        g("v_mov_b32 v36, 1.0\nv_mov_b32 v37, 0")
        for r in range(16):
            g(f"v_sub_f32 v39, 0, v35\nv_mov_b32 v38, v34\nds_write_b64 v9, v[38:39] offset:{r*528}\nds_write_b64 v9, v[36:37] offset:{8448+r*528}")
            if r<15:
                cmul(g,34,35,34,35,32,33,20); cmul(g,36,37,36,37,30,31,20)
        g("s_waitcnt lgkmcnt(0)")
        a=100+4*R
        g(f"v_mov_b32 v{a}, 0\nv_mov_b32 v{a+1}, 0\nv_mov_b32 v{a+2}, 0\nv_mov_b32 v{a+3}, 0")
        for S in range(8):
            g(f"ds_read_b128 v[{40+8*(S&1)}:{43+8*(S&1)}], v24 offset:{S*64}\nds_read_b128 v[{44+8*(S&1)}:{47+8*(S&1)}], v24 offset:{8448+S*64}\ns_waitcnt lgkmcnt(0)")
            for e in range(4):
                g(f"v_mfma_f32_16x16x4_f32 v[{a}:{a+3}], v{40+8*(S&1)+e}, v{44+8*(S&1)+e}, v[{a}:{a+3}]")
        g("s_nop 7\ns_nop 3")
    g("s_nop 7\nv_lshlrev_b32 v25, 8, v23\nv_lshl_add_u32 v25, v22, 2, v25\nv_add_u32 v25, v8, v25")
    for R in range(4):
        for r in range(4): g(f"ds_write_b32 v25, v{100+4*R+r} offset:{R*1024+r*64}")
    g("s_waitcnt lgkmcnt(0)\ns_barrier")
    g("v_and_b32 v26, 2, v1\ns_mov_b32 s26, 16896\nv_mul_lo_u32 v26, v26, s26\ns_mov_b32 s27, 0x7fff\ns_mov_b32 s28, 128")
    for e in range(16):
        g(f"v_lshlrev_b32 v27, 4, v5\nv_add_u32 v27, {e}, v27\nv_cvt_f32_u32 v27, v27\nv_bfe_u32 v28, v27, 16, 1\nv_add3_u32 v27, v27, v28, s27\nv_and_b32 v27, 0xffff0000, v27")
        g("v_bfe_u32 v28, v27, 23, 8\nv_subrev_u32 v28, 134, v28\nv_max_i32 v28, 0, v28\nv_min_i32 v28, 3, v28\nv_cvt_u32_f32 v27, v27")
        g("v_lshlrev_b32 v29, v28, s28\nv_cmp_eq_u32 vcc, 0, v28\ns_nop 1\nv_cndmask_b32 v29, v29, 0, vcc\nv_sub_u32 v27, v27, v29\nv_lshrrev_b32 v27, v28, v27\nv_lshl_add_u32 v27, v28, 8, v27\nv_lshl_add_u32 v27, v27, 2, v26")
        g(f"ds_read_b32 v{40+e}, v27\nds_read_b32 v{56+e}, v27 offset:16896")
    g("s_waitcnt lgkmcnt(0)")
    for e in range(16): g(f"v_add_f32 v{40+e}, v{40+e}, v{56+e}")
    for gq in range(2):
        for j in range(4):
            e0=8*gq+7-2*j; e1=e0-1
            g(f"v_cvt_pk_bf16_f32 v{72+4*gq+j}, v{40+e0}, v{40+e1}")
            g(f"v_lshlrev_b32 v27, 16, v{72+4*gq+j}\nv_and_b32 v28, 0xffff0000, v{72+4*gq+j}\nv_sub_f32 v27, v{40+e0}, v27\nv_sub_f32 v28, v{40+e1}, v28\nv_cvt_pk_bf16_f32 v{80+4*gq+j}, v27, v28")
    g(f"v_lshlrev_b32 v27, 13, v3\nv_lshl_add_u32 v27, v5, 5, v27\ns_mov_b32 s23, {KBUF}")
    g("buffer_store_dwordx4 v[72:75], v27, s[8:11], s23 offen\nbuffer_store_dwordx4 v[76:79], v27, s[8:11], s23 offen offset:16")
    g("v_add_u32 v27, 4096, v27\nbuffer_store_dwordx4 v[80:83], v27, s[8:11], s23 offen\nbuffer_store_dwordx4 v[84:87], v27, s[8:11], s23 offen offset:16")
    g.lab("L_prep_end")
    g("s_endpgm")
    g.o.append(kdesc("prep_kernel",116))
```

```python
from gen1 import *
def bfr(g,d,s):
    g(f"v_cvt_pk_bf16_f32 v{d}, v{s}, v{s}\nv_lshlrev_b32 v{d}, 16, v{d}")
def conv(g,name,xin,xout,stats):
    KOFF=33280
    khead(g,name)
    g("s_cmp_ge_u32 s2, 512\ns_cbranch_scc1 L_end_"+name)
    srd(g,8,14,WSZ); srd(g,12,8,1024)
    g("v_lshrrev_b32 v1, 6, v0\nv_and_b32 v2, 63, v0")
    g(f"s_lshl_b32 s3, s2, 13\ns_add_u32 s3, s3, {KBUF}\ns_lshl_b32 s4, s2, 12\ns_add_u32 s5, s4, {xout}\ns_add_u32 s4, s4, {xin}\ns_lshl_b32 s6, s2, 1\ns_mov_b32 s7, {stats}\ns_waitcnt lgkmcnt(0)")
    g("v_lshlrev_b32 v3, 12, v1\nv_lshl_add_u32 v3, v2, 4, v3")
    for i in range(4): g(f"buffer_load_dwordx4 v[{16+4*i}:{19+4*i}], v3, s[8:11], s3 offen offset:{i*1024}")
    g("v_lshlrev_b32 v4, 5, v0\nbuffer_load_dwordx4 v[32:35], v4, s[8:11], s4 offen\nbuffer_load_dwordx4 v[36:39], v4, s[8:11], s4 offen offset:16")
    g("v_mov_b32 v5, s6\nbuffer_load_ushort v6, v5, s[12:15], 0 offen\nv_lshlrev_b32 v5, 7, v0\nv_add_u32 v7, 16384, v5")
    for i in range(8):
        g(f"buffer_load_dwordx4 v[{40+4*i}:{43+4*i}], v5, s[8:11], s7 offen offset:{i*16}\nbuffer_load_dwordx4 v[{72+4*i}:{75+4*i}], v7, s[8:11], s7 offen offset:{i*16}")
    g("v_mov_b32 v8, 0\nv_mov_b32 v9, 0\nv_mov_b32 v10, 0\nv_mov_b32 v11, 0\ns_mov_b32 s16, 7680\nv_mul_lo_u32 v12, v1, s16")
    g(f"v_add_u32 v12, {KOFF}, v12\nv_lshl_add_u32 v13, v2, 4, v12\nds_write_b128 v13, v[8:11]\nds_write_b128 v13, v[8:11] offset:1024\nv_and_b32 v14, 31, v2\nv_lshl_add_u32 v14, v14, 4, v12\nds_write_b128 v14, v[8:11] offset:2048")
    g("v_lshrrev_b32 v14, 2, v2\nv_and_b32 v14, 7, v14\ns_mov_b32 s16, 4160\nv_mul_lo_u32 v14, v14, s16\nv_and_b32 v15, 3, v2\nv_lshl_add_u32 v14, v15, 4, v14\nds_write_b128 v14, v[8:11]")
    g("v_lshrrev_b32 v14, 2, v2\ns_mov_b32 s16, 80\nv_mul_lo_u32 v14, v14, s16\nv_lshl_add_u32 v14, v15, 4, v14\nv_add_u32 v14, v12, v14\ns_waitcnt vmcnt(19)")
    for i in range(4): g(f"ds_write_b128 v14, v[{16+4*i}:{19+4*i}] offset:{2560+i*1280}")
    g("s_waitcnt vmcnt(0)\nv_lshlrev_b32 v6, 16, v6\ns_mov_b32 s16, 0x3b000000\ns_mov_b32 s17, 0x3727c5ac")
    for e in range(16):
        s=40+2*e; q=s+1
        g(f"v_add_f32 v{s}, v{s}, v{s+32}\nv_add_f32 v{q}, v{q}, v{q+32}\nv_mul_f32 v{s}, s16, v{s}\nv_mul_f32 v{q}, s16, v{q}\nv_fma_f32 v{q}, -v{s}, v{s}, v{q}\nv_max_f32 v{q}, 0, v{q}")
        bfr(g,s,s); bfr(g,q,q)
        g(f"v_add_f32 v{q}, s17, v{q}"); bfr(g,q,q)
        g(f"v_sqrt_f32 v{q}, v{q}\ns_nop 0"); bfr(g,q,q)
        g(f"v_rcp_f32 v{q}, v{q}")
        if e&1: g(f"v_and_b32 v{104+e}, 0xffff0000, v{32+(e>>1)}")
        else: g(f"v_lshlrev_b32 v{104+e}, 16, v{32+(e>>1)}")
        g(f"v_sub_f32 v{s}, v{104+e}, v{s}"); bfr(g,s,s)
        g(f"v_mul_f32 v{s}, v{s}, v{q}"); bfr(g,s,s)
        g(f"v_mul_f32 v{120+e}, v{s}, v6"); bfr(g,120+e,120+e)
        if e&1: g(f"v_cvt_pk_bf16_f32 v{20+(e>>1)}, v{s-2}, v{s}")
    g("v_lshlrev_b32 v14, 4, v0\nds_write_b128 v14, v[24:27] offset:48656\nv_mov_b32 v15, 0\nds_write_b128 v15, v[8:11] offset:48640\ns_waitcnt lgkmcnt(0)\ns_barrier\nds_read_b128 v[16:19], v14 offset:48640\ns_waitcnt lgkmcnt(0)")
    for k in range(11): g(f"v_alignbit_b32 v{40+k}, v{17+k}, v{16+k}, 16")
    g("v_lshlrev_b32 v14, 5, v0")
    for pp in range(2):
        for c in range(8):
            rel=8*pp+c+1
            b=(16+rel//2) if rel%2==0 else (40+rel//2)
            g(f"v_mov_b32 v52, v{b}\nv_mov_b32 v53, v{b+1}\nv_mov_b32 v54, v{b+2}\nv_mov_b32 v55, v{b+3}\nds_write_b128 v14, v[52:55] offset:{c*4160+64+16*pp}")
            g("s_nop 1")
    g("v_and_b32 v3, 31, v2\nv_lshrrev_b32 v4, 5, v2\nv_and_b32 v5, 7, v3\nv_lshrrev_b32 v7, 3, v3\ns_mov_b32 s16, 4160\nv_mul_lo_u32 v5, v5, s16\nv_sub_u32 v7, v7, v4\nv_add_u32 v7, 2, v7\nv_lshl_add_u32 v5, v7, 4, v5")
    g("s_mov_b32 s16, 80\nv_mul_lo_u32 v7, v3, s16\nv_lshl_add_u32 v7, v4, 4, v7\nv_add_u32 v7, v12, v7")
    for r in range(32): g(f"v_mov_b32 v{136+r}, 0")
    g("s_waitcnt lgkmcnt(0)\ns_barrier")
    steps=[(m,ks) for m in range(64) for ks in range(2)]
    D=3; NB=4
    def nrd(i): return 3 if steps[i][0]<32 else 2
    def issue(i):
        m,ks=steps[i]; b=168+12*(i%NB)
        g(f"ds_read_b128 v[{b}:{b+3}], v5 offset:{(4*m-2*ks+2)*16}")
        g(f"ds_read_b128 v[{b+8}:{b+11}], v7 offset:{(64-m)*80+32*ks}")
        if m<32: g(f"ds_read_b128 v[{b+4}:{b+7}], v7 offset:{(32-m)*80+32*ks}")
    for i in range(D): issue(i)
    for i in range(len(steps)):
        if i+D<len(steps): issue(i+D)
        out=sum(nrd(j) for j in range(i+1,min(i+D+1,len(steps))))
        g(f"s_waitcnt lgkmcnt({out})")
        b=168+12*(i%NB)
        g(f"v_mfma_f32_32x32x16_bf16 v[152:167], v[{b}:{b+3}], v[{b+8}:{b+11}], v[152:167]")
        if steps[i][0]<32: g(f"v_mfma_f32_32x32x16_bf16 v[136:151], v[{b}:{b+3}], v[{b+4}:{b+7}], v[136:151]")
    g("s_nop 7\ns_nop 7\ns_barrier")
    g("v_lshlrev_b32 v5, 7, v3\nv_lshl_add_u32 v5, v4, 4, v5\nv_lshl_add_u32 v5, v1, 13, v5")
    for cg in range(2):
        for q in range(4): g(f"ds_write_b128 v5, v[{136+16*cg+4*q}:{139+16*cg+4*q}] offset:{cg*4096+q*32}")
    g("s_waitcnt lgkmcnt(0)\ns_barrier\nv_lshlrev_b32 v5, 6, v0")
    for i in range(4): g(f"ds_read_b128 v[{40+4*i}:{43+4*i}], v5 offset:{i*16}\nds_read_b128 v[{56+4*i}:{59+4*i}], v5 offset:{8192+i*16}")
    g("s_waitcnt lgkmcnt(0)")
    for e in range(16):
        g(f"v_add_f32 v{40+e}, v{40+e}, v{56+e}"); bfr(g,40+e,40+e)
        g(f"v_add_f32 v{40+e}, v{40+e}, v{120+e}"); bfr(g,40+e,40+e)
        g(f"v_add_f32 v{40+e}, v{40+e}, v{104+e}")
        if e&1: g(f"v_cvt_pk_bf16_f32 v{20+(e>>1)}, v{40+e-1}, v{40+e}")
    g("v_lshlrev_b32 v4, 5, v0\nbuffer_store_dwordx4 v[20:23], v4, s[8:11], s5 offen\nbuffer_store_dwordx4 v[24:27], v4, s[8:11], s5 offen offset:16")
    g.lab("L_end_"+name); g("s_endpgm")
    g.o.append(kdesc(name,216))
```

```python
from gen2 import *
def qkv(g,name,xin):
    khead(g,name)
    g("s_cmp_ge_u32 s2, 256\ns_cbranch_scc1 L_end_"+name)
    srd(g,8,14,WSZ)
    g("s_mov_b32 s20, 0x05040100\ns_mov_b32 s21, 0x07060302")
    g("v_lshrrev_b32 v1, 6, v0\nv_and_b32 v2, 63, v0\nv_and_b32 v3, 15, v2\nv_lshrrev_b32 v4, 4, v2\ns_nop 0\nv_readfirstlane_b32 s4, v1")
    g("s_lshr_b32 s5, s2, 3\ns_and_b32 s6, s2, 7\ns_mul_i32 s6, s6, 12\ns_mul_i32 s7, s4, 3\ns_add_u32 s6, s6, s7")
    g(f"s_lshl_b32 s7, s6, 14\ns_add_u32 s7, s7, {WQT}\ns_lshl_b32 s16, s5, 7\ns_add_u32 s16, s16, {xin}\ns_waitcnt lgkmcnt(0)")
    g("v_and_b32 v5, 7, v0\nv_lshrrev_b32 v6, 3, v0\nv_lshlrev_b32 v7, 15, v6\nv_lshl_add_u32 v7, v5, 4, v7")
    g("v_add_u32 v8, 0x100000, v7")
    for i in range(8):
        g(f"buffer_load_dwordx4 v[{16+4*i}:{19+4*i}], v7, s[8:11], s16 offen\nbuffer_load_dwordx4 v[{48+4*i}:{51+4*i}], v8, s[8:11], s16 offen\nv_add_u32 v7, 4096, v7\nv_add_u32 v8, 4096, v8")
    g("v_lshlrev_b32 v9, 10, v3\nv_lshl_add_u32 v9, v4, 4, v9")
    for c in range(3):
        for k in range(16):
            a=(c*16+k)*4
            g(f"buffer_load_dwordx4 a[{a}:{a+3}], v9, s[8:11], s7 offen offset:{k*64}")
        g("v_add_u32 v9, 16384, v9")
    g("s_waitcnt vmcnt(48)")
    for blk in range(2):
        transp8(g,16+32*blk,80,20,21)
        for tt in range(8):
            g(f"v_lshl_add_u32 v10, v5, 3, {tt}\nv_and_b32 v11, 15, v10\nv_add_u32 v12, {32*blk}, v6\nv_xor_b32 v11, v11, v12\nv_lshlrev_b32 v11, 4, v11\nv_lshl_add_u32 v11, v10, 10, v11\nds_write_b128 v11, v[{80+4*tt}:{83+4*tt}]")
    for k4 in range(4):
        g(f"v_add_u32 v10, {4*k4}, v4\nv_xor_b32 v10, v10, v3\nv_lshlrev_b32 v10, 4, v10\nv_lshl_add_u32 v{12+k4}, v3, 10, v10")
    for r in range(112,180): g(f"v_mov_b32 v{r}, 0")
    for r in range(180,184): g(f"v_mov_b32 v{r}, 0x3f803f80")
    g("s_lshl_b32 s17, s4, 14\nv_mov_b32 v10, s17\ns_waitcnt lgkmcnt(0)\ns_barrier")
    for k4 in range(4): g(f"v_add_u32 v{184+k4}, v{12+k4}, v10")
    def rd(k):
        b=16+20*(k&1)
        for ts in range(4): g(f"ds_read_b128 v[{b+4*ts}:{b+4*ts+3}], v{12+(k&3)} offset:{ts*16384+(k>>2)*256}")
        g(f"ds_read_b128 v[{b+16}:{b+19}], v{184+(k&3)} offset:{(k>>2)*256}")
    rd(0)
    for k in range(16):
        if k<15: rd(k+1)
        g(f"s_waitcnt vmcnt({max(0,32-k-0)}) lgkmcnt({5 if k<15 else 0})" if k<16 else "")
        if k==0: g("s_waitcnt vmcnt(0)")
        b=16+20*(k&1)
        for c in range(3):
            a=(c*16+k)*4
            for ts in range(4):
                d=112+16*c+4*ts
                g(f"v_mfma_f32_16x16x32_bf16 v[{d}:{d+3}], a[{a}:{a+3}], v[{b+4*ts}:{b+4*ts+3}], v[{d}:{d+3}]")
            g(f"v_mfma_f32_16x16x32_bf16 v[{160+4*c}:{163+4*c}], a[{a}:{a+3}], v[180:183], v[{160+4*c}:{163+4*c}]")
        g(f"v_mfma_f32_16x16x32_bf16 v[172:175], v[{b+16}:{b+19}], v[{b+16}:{b+19}], v[172:175]")
        g(f"v_mfma_f32_16x16x32_bf16 v[176:179], v[{b+16}:{b+19}], v[180:183], v[176:179]")
    g("s_nop 7\ns_nop 1")
    g("v_and_b32 v10, 3, v3\nv_mov_b32 v16, v172\nv_mov_b32 v17, v176")
    for r in range(1,4):
        g(f"v_cmp_eq_u32 vcc, {r}, v10\ns_nop 1\nv_cndmask_b32 v16, v16, v{172+r}, vcc\nv_cndmask_b32 v17, v17, v{176+r}, vcc")
    g("s_mov_b32 s18, 0x3b000000\ns_mov_b32 s19, 0x3727c5ac\nv_mul_f32 v17, s18, v17\nv_mul_f32 v16, s18, v16\nv_fma_f32 v16, -v17, v17, v16\nv_max_f32 v16, 0, v16")
    bfr(g,17,17); bfr(g,16,16); g("v_add_f32 v16, s19, v16"); bfr(g,16,16); g("v_sqrt_f32 v16, v16\ns_nop 0"); bfr(g,16,16); g("v_rcp_f32 v16, v16")
    g("s_barrier\nv_lshrrev_b32 v10, 2, v3\nv_cmp_eq_u32 vcc, v10, v4\nv_lshl_add_u32 v11, v1, 4, v3\nv_lshlrev_b32 v11, 3, v11\ns_and_saveexec_b64 s[30:31], vcc\nds_write_b64 v11, v[16:17]\ns_mov_b64 exec, s[30:31]\ns_waitcnt lgkmcnt(0)\ns_barrier\nv_lshlrev_b32 v11, 3, v3")
    for ts in range(4): g(f"ds_read_b64 v[{20+2*ts}:{21+2*ts}], v11 offset:{ts*128}")
    g("s_waitcnt lgkmcnt(0)")
    g("s_lshl_b32 s16, s5, 6\nv_add_u32 v10, s16, v3")
    for c in range(3):
        for ts in range(4):
            for r in range(4):
                d=112+16*c+4*ts+r
                g(f"v_fma_f32 v{d}, -v{21+2*ts}, v{160+4*c+r}, v{d}\nv_mul_f32 v{d}, v{d}, v{20+2*ts}")
        g(f"s_add_u32 s22, s6, {c}\ns_and_b32 s23, s22, 31\ns_lshl_b32 s23, s23, 16\ns_lshr_b32 s24, s22, 5\ns_lshl_b32 s25, s24, 21\ns_add_u32 s23, s23, s25\ns_add_u32 s23, s23, {QB}\ns_cmp_eq_u32 s24, 2\ns_cbranch_scc1 L_v{c}_{name}")
        g("v_lshlrev_b32 v11, 5, v10\nv_lshl_add_u32 v11, v4, 3, v11")
        for ts in range(4):
            d=112+16*c+4*ts
            g(f"v_cvt_pk_bf16_f32 v30, v{d}, v{d+1}\nv_cvt_pk_bf16_f32 v31, v{d+2}, v{d+3}\nbuffer_store_dwordx2 v[30:31], v11, s[8:11], s23 offen offset:{ts*512}\ns_nop 0")
        g(f"s_branch L_n{c}_{name}")
        g.lab(f"L_v{c}_{name}")
        g("v_lshlrev_b32 v11, 14, v4\nv_lshl_add_u32 v11, v10, 1, v11")
        for r in range(4):
            for ts in range(4):
                d=112+16*c+4*ts+r
                g(f"v_cvt_pk_bf16_f32 v30, v{d}, v{d}\nbuffer_store_short v30, v11, s[8:11], s23 offen offset:{ts*32}")
            g("v_add_u32 v11, 4096, v11")
        g.lab(f"L_n{c}_{name}")
    g.lab("L_end_"+name); g("s_endpgm")
    g.o.append(kdesc(name,188,192))

def attn(g):
    name="attn_kernel"
    khead(g,name)
    g("s_cmp_ge_u32 s2, 512\ns_cbranch_scc1 L_end_"+name)
    srd(g,8,14,WSZ)
    g("v_lshrrev_b32 v1, 6, v0\nv_and_b32 v2, 31, v0\nv_bfe_u32 v3, v0, 5, 1\ns_nop 0\nv_readfirstlane_b32 s4, v1")
    g("s_lshr_b32 s5, s2, 3\ns_lshl_b32 s5, s5, 5\ns_and_b32 s6, s2, 7\ns_lshl_b32 s6, s6, 2\ns_add_u32 s6, s6, s4\ns_lshl_b32 s7, s6, 16")
    g(f"s_add_u32 s16, s7, {QB}\ns_add_u32 s17, s7, {KB}\ns_add_u32 s18, s7, {VT}\ns_waitcnt lgkmcnt(0)")
    g("v_add_u32 v4, s5, v2\nv_lshlrev_b32 v4, 5, v4\nv_lshl_add_u32 v4, v3, 4, v4\nbuffer_load_dwordx4 v[8:11], v4, s[8:11], s16 offen")
    g("v_and_b32 v5, 0x13, v2\nv_bfe_u32 v6, v2, 2, 1\nv_lshl_add_u32 v5, v6, 3, v5\nv_bfe_u32 v6, v2, 3, 1\nv_lshl_add_u32 v5, v6, 2, v5")
    g("s_sub_u32 s19, s5, 256\nv_add_u32 v5, s19, v5\nv_lshlrev_b32 v5, 5, v5\nv_lshl_add_u32 v5, v3, 4, v5\nv_add_u32 v5, s17, v5")
    g("s_mov_b32 s24, 0\ns_mov_b32 s25, 4096\ns_mov_b32 s26, 8192")
    for jb in range(9): g(f"buffer_load_dwordx4 v[{12+4*jb}:{15+4*jb}], v5, s[8:11], s{24+(jb>>2)} offen offset:{(jb&3)*1024}")
    g("v_and_b32 v6, 27, v2\nv_cmp_eq_u32 vcc, 16, v6\nv_mov_b32 v6, 0x3f803f80\ns_nop 0\nv_cndmask_b32 v6, 0, v6, vcc")
    for r in range(72): g(f"v_accvgpr_write_b32 a{r}, v6")
    g("v_lshlrev_b32 v6, 12, v2\nv_lshl_add_u32 v6, v3, 4, v6\ns_lshl_b32 s19, s19, 1\nv_add_u32 v6, s19, v6\nv_add_u32 v6, s18, v6\nv_cmp_gt_u32 vcc, 16, v2\ns_and_saveexec_b64 s[30:31], vcc")
    for i in range(18): g(f"buffer_load_dwordx4 a[{4*i}:{4*i+3}], v6, s[8:11], 0 offen offset:{i*32}")
    g("s_mov_b64 exec, s[30:31]")
    for r in range(48,192): g(f"v_mov_b32 v{r}, 0")
    g("s_waitcnt vmcnt(18)")
    for jb in range(9):
        g(f"v_mfma_f32_32x32x16_bf16 v[{48+16*jb}:{63+16*jb}], v[{12+4*jb}:{15+4*jb}], v[8:11], v[{48+16*jb}:{63+16*jb}]")
    g("s_nop 7\ns_nop 7\nv_mov_b32 v7, 0xf149f2ca\nv_lshlrev_b32 v6, 3, v3\nv_sub_u32 v6, v2, v6")
    for r in range(16):
        c=16*(r>>3)+(r&7)
        g(f"v_cmp_lt_i32 vcc, v6, {c}\nv_cmp_ge_i32 s[32:33], v6, {c}\ns_nop 0\nv_cndmask_b32 v{48+r}, v7, v{48+r}, vcc\nv_cndmask_b32 v{176+r}, v7, v{176+r}, s[32:33]")
    for jb in range(8):
        g(f"s_cmp_ge_u32 s5, {256-32*jb}\ns_cbranch_scc1 L_mk_done")
        for r in range(16): g(f"v_mov_b32 v{48+16*jb+r}, v7")
    g.lab("L_mk_done")
    g("v_max_f32 v4, v48, v49")
    for r in range(50,192,2): g(f"v_max3_f32 v4, v4, v{r}, v{r+1}")
    g("v_xor_b32 v5, 32, v0\nv_and_b32 v5, 63, v5\nv_lshlrev_b32 v5, 2, v5\nds_bpermute_b32 v6, v5, v4\ns_mov_b32 s20, 0x3eb8aa3b\ns_waitcnt lgkmcnt(0)\nv_max_f32 v4, v4, v6\nv_mul_f32 v4, s20, v4")
    for r in range(192,208): g(f"v_mov_b32 v{r}, 0")
    g("s_waitcnt vmcnt(0)")
    for i in range(18):
        b=48+8*i; p=12+4*(i&1)
        for r in range(8): g(f"v_fma_f32 v{b+r}, v{b+r}, s20, -v4")
        for r in range(8): g(f"v_exp_f32 v{b+r}, v{b+r}")
        g("s_nop 0")
        for j in range(4): g(f"v_cvt_pk_bf16_f32 v{p+j}, v{b+2*j}, v{b+2*j+1}")
        g(f"s_nop 1\nv_mfma_f32_32x32x16_bf16 v[192:207], a[{4*i}:{4*i+3}], v[{p}:{p+3}], v[192:207]")
    g("s_nop 7\ns_nop 7\nv_rcp_f32 v4, v200\ns_nop 0")
    for r in range(8): g(f"v_mul_f32 v{192+r}, v{192+r}, v4")
    for j in range(4): g(f"v_cvt_pk_bf16_f32 v{8+j}, v{192+2*j}, v{193+2*j}")
    g(f"v_add_u32 v5, s5, v2\nv_lshlrev_b32 v5, 10, v5\nv_lshl_add_u32 v5, v3, 3, v5\ns_lshl_b32 s19, s6, 5\ns_add_u32 s19, s19, {OB}")
    g("buffer_store_dwordx2 v[8:9], v5, s[8:11], s19 offen\nbuffer_store_dwordx2 v[10:11], v5, s[8:11], s19 offen offset:16")
    g.lab("L_end_"+name); g("s_endpgm")
    g.o.append(kdesc(name,208,72))
```

```python
from gen3 import *
def oproj(g,name,xres,xout,stats,final):
    khead(g,name)
    g("s_cmp_ge_u32 s2, 256\ns_cbranch_scc1 L_end_"+name)
    srd(g,8,14,WSZ)
    if final: srd(g,12,12,2048*512*2)
    g("v_lshrrev_b32 v1, 6, v0\nv_and_b32 v2, 63, v0\nv_and_b32 v3, 15, v2\nv_lshrrev_b32 v4, 4, v2\ns_nop 0\nv_readfirstlane_b32 s4, v1")
    g("s_lshr_b32 s5, s2, 1\ns_lshl_b32 s5, s5, 4\ns_and_b32 s6, s2, 1\ns_lshl_b32 s7, s6, 8\ns_lshl_b32 s16, s4, 6\ns_add_u32 s7, s7, s16")
    g(f"s_lshl_b32 s16, s7, 10\ns_add_u32 s16, s16, {WOT}\ns_lshl_b32 s17, s5, 10\ns_add_u32 s17, s17, {OB}\ns_waitcnt lgkmcnt(0)")
    g("v_lshlrev_b32 v5, 10, v3\nv_lshl_add_u32 v5, v4, 4, v5")
    for k in range(16): g(f"buffer_load_dwordx4 v[{16+4*k}:{19+4*k}], v5, s[8:11], s17 offen offset:{k*64}")
    g("v_mov_b32 v6, v5")
    for rt in range(4):
        for k in range(16):
            a=(rt*16+k)*4
            g(f"buffer_load_dwordx4 a[{a}:{a+3}], v6, s[8:11], s16 offen offset:{k*64}")
        g("v_add_u32 v6, 16384, v6")
    g(f"v_lshlrev_b32 v7, 14, v4\nv_lshl_add_u32 v7, v3, 1, v7\ns_lshl_b32 s18, s7, 12\ns_lshl_b32 s19, s5, 1\ns_add_u32 s18, s18, s19\ns_add_u32 s19, s18, {xout}\ns_add_u32 s18, s18, {xres}\nv_mov_b32 v8, v7")
    for rt in range(4):
        for r in range(4):
            g(f"buffer_load_ushort v{96+4*rt+r}, v8, s[8:11], s18 offen\nv_add_u32 v8, {4096 if r<3 else 65536-3*4096}, v8")
    for r in range(80,96): g(f"v_mov_b32 v{r}, 0")
    for rt in range(4):
        g(f"s_waitcnt vmcnt({min(63,16+48-16*rt)})")
        for k in range(16):
            a=(rt*16+k)*4
            g(f"v_mfma_f32_16x16x32_bf16 v[{80+4*rt}:{83+4*rt}], a[{a}:{a+3}], v[{16+4*k}:{19+4*k}], v[{80+4*rt}:{83+4*rt}]")
    g("s_nop 7\ns_waitcnt vmcnt(0)")
    for i in range(16):
        bfr(g,80+i,80+i)
        g(f"v_lshlrev_b32 v{96+i}, 16, v{96+i}\nv_add_f32 v{80+i}, v{80+i}, v{96+i}")
    if final:
        g("v_add_u32 v8, s5, v3\nv_lshlrev_b32 v8, 10, v8\nv_lshl_add_u32 v8, v4, 3, v8\ns_lshl_b32 s16, s7, 1")
        for rt in range(4):
            g(f"v_cvt_pk_bf16_f32 v10, v{80+4*rt}, v{81+4*rt}\nv_cvt_pk_bf16_f32 v11, v{82+4*rt}, v{83+4*rt}\nbuffer_store_dwordx2 v[10:11], v8, s[12:15], s16 offen offset:{rt*32}\ns_nop 0")
    else:
        g("v_mov_b32 v10, 0\nv_mov_b32 v11, 0")
        for rt in range(4):
            for r in range(4):
                i=80+4*rt+r
                g(f"v_cvt_pk_bf16_f32 v12, v{i}, v{i}\nbuffer_store_short v12, v7, s[8:11], s19 offen\nv_add_u32 v7, {4096 if r<3 else 65536-3*4096}, v7\nv_lshlrev_b32 v13, 16, v12\nv_add_f32 v10, v10, v13\nv_fmac_f32 v11, v13, v13")
        g("v_lshlrev_b32 v12, 3, v0\nds_write_b64 v12, v[10:11]\ns_waitcnt lgkmcnt(0)\ns_barrier\ns_cmp_lg_u32 s4, 0\ns_cbranch_scc1 L_end_"+name)
        g("v_lshlrev_b32 v12, 3, v3")
        for i in range(16): g(f"ds_read_b64 v[{16+2*i}:{17+2*i}], v12 offset:{i*128}")
        g("s_waitcnt lgkmcnt(0)")
        for i in range(1,16): g(f"v_add_f32 v16, v16, v{16+2*i}\nv_add_f32 v17, v17, v{17+2*i}")
        g(f"s_lshl_b32 s16, s6, 14\ns_lshl_b32 s17, s5, 3\ns_add_u32 s16, s16, s17\ns_add_u32 s16, s16, {stats}\nv_cmp_gt_u32 vcc, 16, v2\ns_and_saveexec_b64 s[30:31], vcc\nbuffer_store_dwordx2 v[16:17], v12, s[8:11], s16 offen")
    g.lab("L_end_"+name); g("s_endpgm")
    g.o.append(kdesc(name,112,256))

def build():
    hdr=open('interleave_layers__ssm_conv_s4__sliding_block__prompt.s.ref').read().split('; Override')[0]
    L=[("prep_kernel",384,256,67584),("conv1_kernel",512,128,50816),("qkv1_kernel",256,256,65536),("attn_kernel",512,256,0),("oproj1_kernel",256,256,2048),
       ("conv2_kernel",512,128,50816),("qkv2_kernel",256,256,65536),("attn_kernel",512,256,0),("oproj2_kernel",256,256,2048)]
    s=hdr+''.join(f"; @launch kernel={n} grid=({gx},1,1) block=({b},1,1) lds={l}\n" for n,gx,b,l in L)
    s+='.amdgcn_target "amdgcn-amd-amdhsa--gfx950"\n.text\n'
    g=G(); prep(g); conv(g,"conv1_kernel",XT[0],XT[1],STATS[0]); conv(g,"conv2_kernel",XT[2],XT[3],STATS[1])
    qkv(g,"qkv1_kernel",XT[1]); qkv(g,"qkv2_kernel",XT[3]); attn(g)
    oproj(g,"oproj1_kernel",XT[1],XT[2],STATS[1],False); oproj(g,"oproj2_kernel",XT[3],0,0,True)
    import re
    for l in g.o:
        m=re.search(r'buffer_.*offset:(\d+)',l)
        assert not m or int(m.group(1))<4096, l
        m=re.search(r'ds_.*offset:(\d+)',l)
        assert not m or int(m.group(1))<65536, l
    open('interleave_layers__ssm_conv_s4__sliding_block__prompt.s','w').write(s+'\n'.join(g.o)+'\n')
if __name__=="__main__": build()
```

```python
import os
VAR=set(os.environ.get('VAR','').split(','))
MB=1<<20
XT=[0,2*MB,4*MB,6*MB]; STATS=[8*MB,8*MB+65536]; KBUF=9*MB; WQT=13*MB; WOT=15*MB
QB=16*MB; KB=18*MB; VT=20*MB; OB=22*MB; WSZ=24*MB
class G:
    def __init__(s): s.o=[]
    def __call__(s,x):
        for l in x.strip('\n').split('\n'):
            if 'kA' in VAR and 'v_mfma' in l: continue
            if 'kB' in VAR and l.strip().startswith('ds_'): continue
            if 'kC' in VAR and 'exec' in l: continue
            s.o.append('    '+l.strip())
    def lab(s,l): s.o.append(l+':')
def stage(g,n):
    if f's{n}' in VAR: g('s_waitcnt vmcnt(0) lgkmcnt(0)\ns_endpgm')
def srd(g,d,slot,nbytes):
    g(f"s_load_dwordx2 s[{d}:{d+1}], s[0:1], {slot*8}")
    g(f"s_mov_b32 s{d+2}, {nbytes}\ns_mov_b32 s{d+3}, 0x00020000")
def khead(g,name):
    g.o.append(f".globl {name}\n.p2align 8\n.type {name},@function\n{name}:")
    if 'empty' in VAR: g("s_endpgm")
def kdesc(name,vg,ag=0):
    acc=(vg+3)//4*4
    tot=acc+ag if ag else vg
    return f""".section .rodata,"a"
.p2align 6
.amdhsa_kernel {name}
  .amdhsa_next_free_vgpr {tot}
  .amdhsa_next_free_sgpr 96
  .amdhsa_accum_offset {acc}
  .amdhsa_group_segment_fixed_size 0
  .amdhsa_kernarg_size 120
  .amdhsa_user_sgpr_count 2
  .amdhsa_user_sgpr_kernarg_segment_ptr 1
  .amdhsa_system_sgpr_workgroup_id_x 1
.end_amdhsa_kernel
.text
"""
def transp8(g,inb,outb,slo,shi):
    for c in range(8):
        for j in range(4):
            g(f"v_perm_b32 v{outb+4*c+j}, v{inb+4*(2*j+1)+(c>>1)}, v{inb+4*(2*j)+(c>>1)}, s{shi if c&1 else slo}")
def cexp(g,dr,di,ar,ai,L,t0,t1,sl2e,s2pi,sL):
    g(f"s_cmp_eq_u32 s29, 0\ns_mov_b32 s{sL}, {float(L[0])!r}\ns_mov_b32 s31, {float(L[1])!r}\ns_cselect_b32 s{sL}, s{sL}, s31")
    g(f"v_mul_f32 v{t0}, s{sL}, v{ar}\nv_mul_f32 v{t1}, s{sL}, v{ai}")
    g(f"v_mul_f32 v{t0}, s{sl2e}, v{t0}\nv_mul_f32 v{t1}, s{s2pi}, v{t1}")
    g(f"v_exp_f32 v{t0}, v{t0}\nv_fract_f32 v{t1}, v{t1}\ns_nop 0")
    g(f"v_cos_f32 v{dr}, v{t1}\nv_sin_f32 v{di}, v{t1}\ns_nop 0")
    g(f"v_mul_f32 v{dr}, v{dr}, v{t0}\nv_mul_f32 v{di}, v{di}, v{t0}")
def cmul(g,dr,di,ar,ai,br,bi,t):
    g(f"v_mul_f32 v{t}, v{ai}, v{bi}\nv_mul_f32 v{t+1}, v{ai}, v{br}")
    g(f"v_fma_f32 v{t}, v{ar}, v{br}, -v{t}\nv_fma_f32 v{di}, v{ar}, v{bi}, v{t+1}\nv_mov_b32 v{dr}, v{t}")

def prep(g):
    khead(g,"prep_kernel")
    srd(g,8,14,WSZ)
    g("s_mov_b32 s20, 0x05040100\ns_mov_b32 s21, 0x07060302")
    g("v_lshrrev_b32 v1, 6, v0\nv_and_b32 v2, 63, v0")
    g("s_cmp_lt_u32 s2, 512\ns_cbranch_scc1 L_kgen")
    g("s_cmp_lt_u32 s2, 576\ns_cbranch_scc1 L_xt")
    g("s_cmp_lt_u32 s2, 640\ns_cbranch_scc0 L_prep_end")
    g("s_sub_u32 s3, s2, 576\ns_cmp_lt_u32 s3, 48\ns_cbranch_scc0 L_wo")
    srd(g,12,10,512*1536*2)
    g(f"s_mov_b32 s22, 3072\ns_mov_b32 s23, {WQT}\ns_mul_i32 s24, s3, 21846\ns_lshr_b32 s24, s24, 16")
    g("s_lshr_b32 s24, s24, 2\ns_mul_i32 s25, s24, 12\ns_sub_u32 s25, s3, s25\ns_branch L_wt")
    g.lab("L_wo")
    srd(g,12,11,512*512*2)
    g(f"s_sub_u32 s3, s3, 48\ns_mov_b32 s22, 1024\ns_mov_b32 s23, {WOT}\ns_lshr_b32 s24, s3, 2\ns_and_b32 s25, s3, 3")
    g.lab("L_wt")
    if 'pw' in VAR: g("s_endpgm")
    g("s_waitcnt lgkmcnt(0)")
    g("v_and_b32 v3, 15, v0\nv_lshrrev_b32 v4, 4, v0")
    g("s_lshl_b32 s26, s24, 7\ns_lshl_b32 s27, s25, 7")
    g("v_lshlrev_b32 v5, 3, v4\nv_add_u32 v5, s26, v5")
    g("v_lshlrev_b32 v6, 3, v3\nv_add_u32 v6, s27, v6")
    g("v_mul_lo_u32 v7, v5, s22\nv_lshl_add_u32 v7, v6, 1, v7")
    for i in range(8):
        g(f"buffer_load_dwordx4 v[{16+4*i}:{19+4*i}], v7, s[12:15], 0 offen\nv_add_u32 v7, s22, v7")
    g("v_lshrrev_b32 v8, 4, v6\nv_lshlrev_b32 v8, 4, v8\nv_lshrrev_b32 v9, 5, v5\nv_add_u32 v8, v8, v9\nv_lshlrev_b32 v8, 10, v8\nv_bfe_u32 v9, v5, 3, 2\nv_lshlrev_b32 v9, 4, v9\nv_and_b32 v10, 15, v6\nv_add_u32 v9, v9, v10\nv_lshl_add_u32 v8, v9, 4, v8\ns_waitcnt vmcnt(0)")
    transp8(g,16,48,20,21)
    for c in range(8):
        g(f"buffer_store_dwordx4 v[{48+4*c}:{51+4*c}], v8, s[8:11], s23 offen offset:{c*16}")
    g("s_branch L_prep_end")
    g.lab("L_xt")
    if 'px' in VAR: g("s_endpgm")
    srd(g,12,0,2048*512*2)
    g("s_sub_u32 s3, s2, 512\ns_lshl_b32 s3, s3, 5\ns_waitcnt lgkmcnt(0)")
    g("v_lshlrev_b32 v3, 3, v1\nv_add_u32 v3, s3, v3")
    g("v_lshlrev_b32 v4, 10, v3\nv_lshl_add_u32 v4, v2, 4, v4")
    for i in range(8):
        if i==4: g("v_add_u32 v4, 4096, v4")
        g(f"buffer_load_dwordx4 v[{16+4*i}:{19+4*i}], v4, s[12:15], 0 offen offset:{(i&3)*1024}")
    g("v_lshlrev_b32 v5, 15, v2\nv_lshl_add_u32 v5, v3, 1, v5\ns_waitcnt vmcnt(0)")
    transp8(g,16,48,20,21)
    for c in range(8):
        g(f"buffer_store_dwordx4 v[{48+4*c}:{51+4*c}], v5, s[8:11], 0 offen\nv_add_u32 v5, 4096, v5")
    for i in range(8):
        g(f"v_mov_b32 v{80+i}, 0\nv_mov_b32 v{88+i}, 0")
        for j in range(4):
            r=16+4*i+j
            g(f"v_lshlrev_b32 v6, 16, v{r}\nv_and_b32 v7, 0xffff0000, v{r}")
            g(f"v_add_f32 v{80+i}, v{80+i}, v6\nv_fmac_f32 v{88+i}, v6, v6\nv_add_f32 v{80+i}, v{80+i}, v7\nv_fmac_f32 v{88+i}, v7, v7")
    for md in ["row_shr:1 row_mask:0xf","row_shr:2 row_mask:0xf","row_shr:4 row_mask:0xf","row_shr:8 row_mask:0xf","row_bcast:15 row_mask:0xa","row_bcast:31 row_mask:0xc"]:
        for i in range(16):
            g(f"v_add_f32_dpp v{80+i}, v{80+i}, v{80+i} {md} bank_mask:0xf bound_ctrl:0")
    g("v_lshlrev_b32 v5, 3, v3\nv_mov_b32 v8, 0\nv_mov_b32 v9, 0\nv_cmp_eq_u32 vcc, 63, v2\ns_and_saveexec_b64 s[30:31], vcc")
    g(f"s_mov_b32 s23, {STATS[0]}")
    for i in range(8):
        g(f"v_mov_b32 v6, v{80+i}\nv_mov_b32 v7, v{88+i}")
        g(f"buffer_store_dwordx2 v[6:7], v5, s[8:11], s23 offen offset:{i*8}")
        g(f"v_add_u32 v10, 16384, v5\nbuffer_store_dwordx2 v[8:9], v10, s[8:11], s23 offen offset:{i*8}\ns_nop 1")
    g("s_branch L_prep_end")
    g.lab("L_kgen")
    if 'pk' in VAR: g("s_endpgm")
    for k in range(6): srd(g,32+4*k,1+k,512*128*2)
    srd(g,56,7,1024)
    g("s_mov_b32 s24, 0x3fb8aa3b\ns_mov_b32 s25, 0x3e22f983")
    g("s_and_b32 s29, s2, 1\ns_andn2_b32 s30, s2, 1\nv_lshrrev_b32 v3, 1, v1\nv_add_u32 v3, s30, v3")
    g("v_and_b32 v4, 1, v1\nv_lshl_add_u32 v5, v4, 6, v2")
    g("v_lshl_add_u32 v6, v3, 7, v5\nv_lshlrev_b32 v6, 1, v6\nv_lshlrev_b32 v7, 1, v3\ns_waitcnt lgkmcnt(0)")
    for k in range(6): g(f"buffer_load_ushort v{10+k}, v6, s[{32+4*k}:{35+4*k}], 0 offen")
    g("buffer_load_ushort v16, v7, s[56:59], 0 offen\ns_waitcnt vmcnt(0)")
    if 'k1' in VAR: g("s_endpgm")
    for k in range(7): g(f"v_lshlrev_b32 v{10+k}, 16, v{10+k}")
    g("v_mul_f32 v16, s24, v16\nv_exp_f32 v16, v16\ns_nop 0\nv_cvt_pk_bf16_f32 v16, v16, v16\nv_lshlrev_b32 v16, 16, v16")
    g("v_mul_f32 v10, v16, v10\nv_mul_f32 v11, v16, v11\nv_mul_f32 v12, v16, v12\nv_mul_f32 v13, v16, v13")
    cmul(g,17,18,14,15,12,13,20)
    g("s_mov_b32 s26, 8704\nv_mul_lo_u32 v8, v1, s26\nv_and_b32 v9, 31, v2\nv_lshl_add_u32 v9, v9, 4, v8")
    g("v_and_b32 v22, 15, v2\nv_lshrrev_b32 v23, 4, v2\ns_mov_b32 s26, 528\nv_mul_lo_u32 v24, v22, s26\nv_lshl_add_u32 v24, v23, 5, v24\nv_add_u32 v24, v8, v24")
    for R,(base,st) in enumerate([((0,512),(1,4)),((256,1024),(2,8))]):
        cexp(g,30,31,10,11,st,20,21,24,25,26)
        cexp(g,32,33,10,11,(16*st[0],16*st[1]),20,21,24,25,26)
        if True:
            cexp(g,36,37,10,11,base,20,21,24,25,26)
            cmul(g,34,35,17,18,36,37,20)
        g("v_mov_b32 v50, 1.0\nv_mov_b32 v51, 0\nv_mov_b32 v48, v34\nv_sub_f32 v49, 0, v35\nv_sub_f32 v33, 0, v33")
        for r in range(15):
            for (o,m,t) in ((48,32,20),(50,30,22)):
                a0=o+4*r
                g(f"v_pk_mul_f32 v[{t}:{t+1}], v[{a0}:{a0+1}], v[{m}:{m+1}] op_sel:[0,0] op_sel_hi:[0,1]")
            for (o,m,t) in ((48,32,20),(50,30,22)):
                a0=o+4*r
                g(f"v_pk_fma_f32 v[{a0+4}:{a0+5}], v[{a0}:{a0+1}], v[{m}:{m+1}], v[{t}:{t+1}] op_sel:[1,1,0] op_sel_hi:[1,0,1] neg_lo:[1,0,0]")
        for q in range(32):
            x=48+2*q; t=36+2*(q&1)
            g(f"v_cvt_pk_bf16_f32 v{40+(q&1)}, v{x}, v{x+1}\nv_lshlrev_b32 v{t}, 16, v{40+(q&1)}\nv_and_b32 v{t+1}, 0xffff0000, v{40+(q&1)}")
            g(f"v_pk_add_f32 v[{t}:{t+1}], v[{x}:{x+1}], v[{t}:{t+1}] neg_lo:[0,1] neg_hi:[0,1]\nv_mov_b32 v{x}, v{40+(q&1)}\nv_cvt_pk_bf16_f32 v{x+1}, v{t}, v{t+1}")
        if 'k3' in VAR: g("s_endpgm")
        a=144+4*R
        g(f"v_mov_b32 v{a}, 0\nv_mov_b32 v{a+1}, 0\nv_mov_b32 v{a+2}, 0\nv_mov_b32 v{a+3}, 0")
        for ph in range(2):
            g("s_mov_b32 exec_lo, -1\ns_mov_b32 exec_hi, 0" if ph==0 else "s_mov_b32 exec_lo, 0\ns_mov_b32 exec_hi, -1")
            for r in range(16):
                g(f"ds_write_b128 v9, v[{48+4*r}:{51+4*r}] offset:{r*528}")
            g("s_mov_b64 exec, -1\ns_waitcnt lgkmcnt(0)")
            for S in range(4):
                g(f"ds_read2_b64 v[{112+8*S}:{115+8*S}], v24 offset0:{S*16} offset1:{S*16+2}\nds_read2_b64 v[{116+8*S}:{119+8*S}], v24 offset0:{S*16+1} offset1:{S*16+3}")
            for S in range(4):
                g(f"s_waitcnt lgkmcnt({6-2*S})")
                A=112+8*S; w=152+4*(S&1)
                g(f"v_mov_b32 v{w}, v{A+1}\nv_mov_b32 v{w+1}, v{A}\nv_mov_b32 v{w+2}, v{A+3}\nv_mov_b32 v{w+3}, v{A+2}")
                g(f"v_mfma_f32_16x16x32_bf16 v[{a}:{a+3}], v[{A}:{A+3}], v[{A+4}:{A+7}], v[{a}:{a+3}]\ns_nop 1")
                g(f"v_mfma_f32_16x16x32_bf16 v[{a}:{a+3}], v[{w}:{w+3}], v[{A+4}:{A+7}], v[{a}:{a+3}]")
    if 'k2' in VAR: g("s_endpgm")
    g("s_nop 7\ns_nop 3\nv_and_b32 v22, 15, v2\nv_lshrrev_b32 v23, 4, v2\nv_lshlrev_b32 v25, 8, v23\nv_lshl_add_u32 v25, v22, 2, v25\nv_add_u32 v25, v8, v25")
    for R in range(2):
        for r in range(4): g(f"ds_write_b32 v25, v{144+4*R+r} offset:{R*1024+r*64}")
    g("s_waitcnt lgkmcnt(0)\ns_barrier")
    g("v_and_b32 v26, 2, v1\ns_mov_b32 s26, 8704\nv_mul_lo_u32 v26, v26, s26\ns_mov_b32 s27, 0x7fff\ns_mov_b32 s28, 128")
    g("s_lshl_b32 s30, s29, 1\ns_add_u32 s31, s30, 1\ns_cmp_eq_u32 s29, 0\ns_cselect_b32 s22, 63, 127\ns_lshl_b32 s23, s29, 6\nv_and_b32 v30, s22, v5\nv_add_u32 v30, s23, v30")
    for ps in range(2):
        if ps==1: g("s_cmp_eq_u32 s29, 0\ns_cbranch_scc1 L_prep_end\nv_and_b32 v30, 63, v5\nv_add_u32 v30, 192, v30")
        g("v_lshlrev_b32 v27, 3, v30\nv_or_b32 v27, 128, v27\nv_ffbh_u32 v27, v27\nv_sub_u32 v28, 24, v27")
        g("v_subrev_u32 v29, s30, v28\nv_lshl_add_u32 v29, v29, 10, v26\nv_min_u32 v27, 1, v28\nv_lshlrev_b32 v27, 9, v27\nv_sub_u32 v29, v29, v27")
        g("v_lshlrev_b32 v31, v28, 1\nv_add_u32 v31, -1, v31\nv_add_u32 v28, 1, v28\nv_lshlrev_b32 v32, 4, v30")
        for e in range(8):
            g(f"v_add_u32 v27, {2*e}, v32\nv_bfe_u32 v33, v27, v28, 1\nv_add3_u32 v27, v27, v31, v33\nv_lshrrev_b32 v27, v28, v27\nv_lshl_add_u32 v27, v27, 2, v29")
            g(f"ds_read_b32 v{40+e}, v27\nds_read_b32 v{56+e}, v27 offset:8704")
        g("s_waitcnt lgkmcnt(0)")
        for e in range(8): g(f"v_add_f32 v{40+e}, v{40+e}, v{56+e}")
        for j in range(4):
            e0=7-2*j; e1=e0-1
            g(f"v_cvt_pk_bf16_f32 v{72+j}, v{40+e0}, v{40+e1}")
        g(f"v_lshlrev_b32 v27, 13, v3\nv_lshl_add_u32 v27, v30, 4, v27\ns_mov_b32 s23, {KBUF}")
        g("buffer_store_dwordx4 v[72:75], v27, s[8:11], s23 offen\ns_nop 1")
    g.lab("L_prep_end")
    g("s_endpgm")
    g.o.append(kdesc("prep_kernel",160))
```

```python
from gen1 import *
def bfr(g,d,s):
    g(f"v_cvt_pk_bf16_f32 v{d}, v{s}, v{s}\nv_lshlrev_b32 v{d}, 16, v{d}")
def conv(g,name,xin,xout,stats):
    KOFF=33280
    khead(g,name)
    g("s_cmp_ge_u32 s2, 512\ns_cbranch_scc1 L_end_"+name)
    srd(g,8,14,WSZ); srd(g,12,8,1024)
    g("v_lshrrev_b32 v1, 6, v0\nv_and_b32 v2, 63, v0")
    g(f"s_lshl_b32 s3, s2, 13\ns_add_u32 s3, s3, {KBUF}\ns_lshl_b32 s4, s2, 12\ns_add_u32 s5, s4, {xout}\ns_add_u32 s4, s4, {xin}\ns_lshl_b32 s6, s2, 1\ns_mov_b32 s7, {stats}\ns_waitcnt lgkmcnt(0)")
    g("v_lshlrev_b32 v3, 4, v0")
    for i in range(2): g(f"buffer_load_dwordx4 v[{16+4*i}:{19+4*i}], v3, s[8:11], s3 offen offset:{i*2048}")
    g("v_lshlrev_b32 v4, 5, v0\nbuffer_load_dwordx4 v[32:35], v4, s[8:11], s4 offen\nbuffer_load_dwordx4 v[36:39], v4, s[8:11], s4 offen offset:16")
    g("v_mov_b32 v5, s6\nbuffer_load_ushort v6, v5, s[12:15], 0 offen\nv_lshlrev_b32 v5, 7, v0\nv_add_u32 v7, 16384, v5")
    for i in range(8):
        g(f"buffer_load_dwordx4 v[{40+4*i}:{43+4*i}], v5, s[8:11], s7 offen offset:{i*16}\nbuffer_load_dwordx4 v[{72+4*i}:{75+4*i}], v7, s[8:11], s7 offen offset:{i*16}")
    g("v_mov_b32 v8, 0\nv_mov_b32 v9, 0\nv_mov_b32 v10, 0\nv_mov_b32 v11, 0\nv_mov_b32 v12, 0")
    g(f"v_add_u32 v12, {KOFF}, v12\nv_lshl_add_u32 v13, v0, 4, v12\nds_write_b128 v13, v[8:11]\nv_and_b32 v14, 31, v2\nv_lshl_add_u32 v14, v14, 4, v12\nds_write_b128 v14, v[8:11] offset:2048")
    g("v_lshrrev_b32 v14, 2, v2\nv_and_b32 v14, 7, v14\ns_mov_b32 s16, 4160\nv_mul_lo_u32 v14, v14, s16\nv_and_b32 v15, 3, v2\nv_lshl_add_u32 v14, v15, 4, v14\nds_write_b128 v14, v[8:11]")
    g("v_lshrrev_b32 v14, 2, v0\ns_mov_b32 s16, 80\nv_mul_lo_u32 v14, v14, s16\nv_lshl_add_u32 v14, v15, 4, v14\nv_add_u32 v14, v12, v14\ns_waitcnt vmcnt(19)")
    for i in range(2): g(f"ds_write_b128 v14, v[{16+4*i}:{19+4*i}] offset:{2560+i*2560}")
    stage(g,1)
    g("s_waitcnt vmcnt(0)\nv_lshlrev_b32 v6, 16, v6\ns_mov_b32 s16, 0x3b000000\ns_mov_b32 s17, 0x3727c5ac")
    for e in range(16):
        s=40+2*e; q=s+1
        g(f"v_add_f32 v{s}, v{s}, v{s+32}\nv_add_f32 v{q}, v{q}, v{q+32}\nv_mul_f32 v{s}, s16, v{s}\nv_mul_f32 v{q}, s16, v{q}\nv_fma_f32 v{q}, -v{s}, v{s}, v{q}\nv_max_f32 v{q}, 0, v{q}")
        bfr(g,s,s); bfr(g,q,q)
        g(f"v_add_f32 v{q}, s17, v{q}"); bfr(g,q,q)
        g(f"v_sqrt_f32 v{q}, v{q}\ns_nop 0"); bfr(g,q,q)
        g(f"v_rcp_f32 v{q}, v{q}")
        if e&1: g(f"v_and_b32 v{104+e}, 0xffff0000, v{32+(e>>1)}")
        else: g(f"v_lshlrev_b32 v{104+e}, 16, v{32+(e>>1)}")
        g(f"v_sub_f32 v{s}, v{104+e}, v{s}"); bfr(g,s,s)
        g(f"v_mul_f32 v{s}, v{s}, v{q}"); bfr(g,s,s)
        g(f"v_mul_f32 v{120+e}, v{s}, v6"); bfr(g,120+e,120+e)
        if e&1: g(f"v_cvt_pk_bf16_f32 v{20+(e>>1)}, v{s-2}, v{s}")
    g("v_lshlrev_b32 v14, 4, v0\nds_write_b128 v14, v[24:27] offset:48656\nv_mov_b32 v15, 0\nds_write_b128 v15, v[8:11] offset:48640\ns_waitcnt lgkmcnt(0)\ns_barrier\nds_read_b128 v[16:19], v14 offset:48640\ns_waitcnt lgkmcnt(0)")
    for k in range(11): g(f"v_alignbit_b32 v{40+k}, v{17+k}, v{16+k}, 16")
    g("v_lshlrev_b32 v14, 5, v0")
    for pp in range(2):
        for c in range(8):
            rel=8*pp+c+1
            b=(16+rel//2) if rel%2==0 else (40+rel//2)
            g(f"v_mov_b32 v52, v{b}\nv_mov_b32 v53, v{b+1}\nv_mov_b32 v54, v{b+2}\nv_mov_b32 v55, v{b+3}\nds_write_b128 v14, v[52:55] offset:{c*4160+64+16*pp}")
            g("s_nop 1")
    g("v_and_b32 v3, 31, v2\nv_lshrrev_b32 v4, 5, v2\nv_and_b32 v5, 7, v3\nv_lshrrev_b32 v7, 3, v3\ns_mov_b32 s16, 4160\nv_mul_lo_u32 v5, v5, s16\nv_sub_u32 v7, v7, v4\nv_add_u32 v7, 2, v7\nv_lshl_add_u32 v5, v7, 4, v5")
    g("s_mov_b32 s16, 80\nv_mul_lo_u32 v7, v3, s16\nv_lshl_add_u32 v7, v4, 4, v7\nv_add_u32 v7, v12, v7\nv_lshl_add_u32 v7, v1, 5, v7\nv_lshlrev_b32 v13, 5, v1\nv_sub_u32 v5, v5, v13")
    for r in range(32): g(f"v_mov_b32 v{136+r}, 0")
    g("s_waitcnt lgkmcnt(0)\ns_barrier")
    stage(g,2)
    steps=[(m,0) for m in range(64)]
    if 'noloop' in VAR: steps=steps[:4]
    D=2; NB=3
    N=32 if 'noloop' not in VAR else 3
    def issue(m):
        b=168+16*(m%NB)
        g(f"ds_read_b128 v[{b}:{b+3}], v5 offset:{(4*m+2)*16}")
        g(f"ds_read_b128 v[{b+8}:{b+11}], v7 offset:{(64-m)*80}")
        g(f"ds_read_b128 v[{b+4}:{b+7}], v7 offset:{(32-m)*80}")
        g(f"ds_read_b128 v[{b+12}:{b+15}], v5 offset:{(4*(m+32)+2)*16}")
    for i in range(D): issue(i)
    for i in range(N):
        if i+D<N: issue(i+D)
        out=4*(min(i+D+1,N)-i-1)
        g(f"s_waitcnt lgkmcnt({out})")
        b=168+16*(i%NB)
        g(f"v_mfma_f32_32x32x16_bf16 v[152:167], v[{b}:{b+3}], v[{b+8}:{b+11}], v[152:167]")
        g(f"v_mfma_f32_32x32x16_bf16 v[136:151], v[{b}:{b+3}], v[{b+4}:{b+7}], v[136:151]")
        g(f"v_mfma_f32_32x32x16_bf16 v[152:167], v[{b+12}:{b+15}], v[{b+4}:{b+7}], v[152:167]")
    stage(g,3)
    g("s_nop 7\ns_nop 7\ns_barrier")
    g("v_lshlrev_b32 v5, 7, v3\nv_lshl_add_u32 v5, v4, 4, v5\nv_lshl_add_u32 v5, v1, 13, v5")
    for cg in range(2):
        for q in range(4): g(f"ds_write_b128 v5, v[{136+16*cg+4*q}:{139+16*cg+4*q}] offset:{cg*4096+q*32}")
    g("s_waitcnt lgkmcnt(0)\ns_barrier\nv_lshlrev_b32 v5, 6, v0")
    for i in range(4): g(f"ds_read_b128 v[{40+4*i}:{43+4*i}], v5 offset:{i*16}\nds_read_b128 v[{56+4*i}:{59+4*i}], v5 offset:{8192+i*16}")
    g("s_waitcnt lgkmcnt(0)")
    for e in range(16):
        g(f"v_add_f32 v{40+e}, v{40+e}, v{56+e}"); bfr(g,40+e,40+e)
        g(f"v_add_f32 v{40+e}, v{40+e}, v{120+e}"); bfr(g,40+e,40+e)
        g(f"v_add_f32 v{40+e}, v{40+e}, v{104+e}")
        if e&1: g(f"v_cvt_pk_bf16_f32 v{20+(e>>1)}, v{40+e-1}, v{40+e}")
    g("v_lshlrev_b32 v4, 5, v0\nbuffer_store_dwordx4 v[20:23], v4, s[8:11], s5 offen\nbuffer_store_dwordx4 v[24:27], v4, s[8:11], s5 offen offset:16")
    g.lab("L_end_"+name); g("s_endpgm")
    g.o.append(kdesc(name,216))
```

```python
from gen2 import *
def qkv(g,name,xin):
    khead(g,name)
    g("s_cmp_ge_u32 s2, 256\ns_cbranch_scc1 L_end_"+name)
    srd(g,8,14,WSZ)
    g("s_mov_b32 s20, 0x05040100\ns_mov_b32 s21, 0x07060302")
    g("v_lshrrev_b32 v1, 6, v0\nv_and_b32 v2, 63, v0\nv_and_b32 v3, 15, v2\nv_lshrrev_b32 v4, 4, v2\ns_nop 0\nv_readfirstlane_b32 s4, v1")
    g("s_lshr_b32 s5, s2, 3\ns_and_b32 s6, s2, 7\ns_lshl_b32 s6, s6, 2\ns_add_u32 s6, s6, s4")
    g(f"s_lshl_b32 s7, s6, 14\ns_add_u32 s7, s7, {WQT}\ns_lshl_b32 s16, s5, 7\ns_add_u32 s16, s16, {xin}\ns_waitcnt lgkmcnt(0)")
    g("v_and_b32 v5, 7, v0\nv_lshrrev_b32 v6, 3, v0\nv_lshlrev_b32 v7, 15, v6\nv_lshl_add_u32 v7, v5, 4, v7")
    g("v_add_u32 v8, 0x100000, v7")
    for i in range(8):
        g(f"buffer_load_dwordx4 v[{16+4*i}:{19+4*i}], v7, s[8:11], s16 offen\nbuffer_load_dwordx4 v[{48+4*i}:{51+4*i}], v8, s[8:11], s16 offen\nv_add_u32 v7, 4096, v7\nv_add_u32 v8, 4096, v8")
    g("v_lshlrev_b32 v9, 4, v2\ns_add_u32 s26, s7, 0x80000\ns_add_u32 s27, s7, 0x100000")
    for k in range(16):
        for c in range(3):
            a=(c*16+k)*4
            g(f"buffer_load_dwordx4 a[{a}:{a+3}], v9, s[8:11], s{[7,26,27][c]} offen offset:{(k&3)*1024}")
        if k&3==3: g("v_add_u32 v9, 4096, v9")
    stage(g,1)
    g("s_waitcnt vmcnt(48)")
    for blk in range(2):
        transp8(g,16+32*blk,80,20,21)
        for tt in range(8):
            g(f"v_lshl_add_u32 v10, v5, 3, {tt}\nv_and_b32 v11, 15, v10\nv_add_u32 v12, {32*blk}, v6\nv_xor_b32 v11, v11, v12\nv_lshlrev_b32 v11, 4, v11\nv_lshl_add_u32 v11, v10, 10, v11\nds_write_b128 v11, v[{80+4*tt}:{83+4*tt}]")
    for k4 in range(4):
        g(f"v_add_u32 v10, {4*k4}, v4\nv_xor_b32 v10, v10, v3\nv_lshlrev_b32 v10, 4, v10\nv_lshl_add_u32 v{12+k4}, v3, 10, v10")
    for r in range(112,180): g(f"v_mov_b32 v{r}, 0")
    for r in range(180,184): g(f"v_mov_b32 v{r}, 0x3f803f80")
    g("s_lshl_b32 s17, s4, 14\nv_mov_b32 v10, s17\ns_waitcnt lgkmcnt(0)\ns_barrier")
    for k4 in range(4): g(f"v_add_u32 v{184+k4}, v{12+k4}, v10")
    def rd(k):
        if 'qa' in VAR: return
        b=16+20*(k&1)
        for ts in range(4): g(f"ds_read_b128 v[{b+4*ts}:{b+4*ts+3}], v{12+(k&3)} offset:{ts*16384+(k>>2)*256}")
        g(f"ds_read_b128 v[{b+16}:{b+19}], v{184+(k&3)} offset:{(k>>2)*256}")
    stage(g,2)
    rd(0)
    for k in range(16):
        if 'noloop' in VAR and k<15: continue
        if k<15: rd(k+1)
        g(f"s_waitcnt vmcnt({45-3*k}) lgkmcnt({5 if k<15 else 0})")
        b=16+20*(k&1)
        if 'qb' in VAR: continue
        for c in range(3):
            a=(c*16+k)*4
            for ts in range(4):
                d=112+16*c+4*ts
                if c<2: g(f"v_mfma_f32_16x16x32_bf16 v[{d}:{d+3}], a[{a}:{a+3}], v[{b+4*ts}:{b+4*ts+3}], v[{d}:{d+3}]")
                else: g(f"v_mfma_f32_16x16x32_bf16 v[{d}:{d+3}], v[{b+4*ts}:{b+4*ts+3}], a[{a}:{a+3}], v[{d}:{d+3}]")
            if c<2: g(f"v_mfma_f32_16x16x32_bf16 v[{160+4*c}:{163+4*c}], a[{a}:{a+3}], v[180:183], v[{160+4*c}:{163+4*c}]")
            else: g(f"v_mfma_f32_16x16x32_bf16 v[{160+4*c}:{163+4*c}], v[180:183], a[{a}:{a+3}], v[{160+4*c}:{163+4*c}]")
        g(f"v_mfma_f32_16x16x32_bf16 v[172:175], v[{b+16}:{b+19}], v[{b+16}:{b+19}], v[172:175]")
        g(f"v_mfma_f32_16x16x32_bf16 v[176:179], v[{b+16}:{b+19}], v[180:183], v[176:179]")
    stage(g,3)
    g("s_nop 7\ns_nop 1")
    g("v_and_b32 v10, 3, v3\nv_mov_b32 v16, v172\nv_mov_b32 v17, v176")
    for r in range(1,4):
        g(f"v_cmp_eq_u32 vcc, {r}, v10\ns_nop 1\nv_cndmask_b32 v16, v16, v{172+r}, vcc\nv_cndmask_b32 v17, v17, v{176+r}, vcc")
    g("s_mov_b32 s18, 0x3b000000\ns_mov_b32 s19, 0x3727c5ac\nv_mul_f32 v17, s18, v17\nv_mul_f32 v16, s18, v16\nv_fma_f32 v16, -v17, v17, v16\nv_max_f32 v16, 0, v16")
    bfr(g,17,17); bfr(g,16,16); g("v_add_f32 v16, s19, v16"); bfr(g,16,16); g("v_sqrt_f32 v16, v16\ns_nop 0"); bfr(g,16,16); g("v_rcp_f32 v16, v16")
    g("s_barrier\nv_lshrrev_b32 v10, 2, v3\nv_cmp_eq_u32 vcc, v10, v4\nv_lshl_add_u32 v11, v1, 4, v3\nv_lshlrev_b32 v11, 3, v11\ns_and_saveexec_b64 s[30:31], vcc\nds_write_b64 v11, v[16:17]\ns_mov_b64 exec, s[30:31]\ns_waitcnt lgkmcnt(0)\ns_barrier\nv_lshlrev_b32 v11, 3, v3")
    for ts in range(4): g(f"ds_read_b64 v[{20+2*ts}:{21+2*ts}], v11 offset:{ts*128}")
    g("v_lshlrev_b32 v12, 5, v4")
    for ts in range(4): g(f"ds_read_b128 v[{32+8*ts}:{35+8*ts}], v12 offset:{ts*128}\nds_read_b128 v[{36+8*ts}:{39+8*ts}], v12 offset:{ts*128+16}")
    g("s_waitcnt lgkmcnt(8)")
    g(f"s_lshl_b32 s16, s5, 6\nv_add_u32 v10, s16, v3\ns_lshl_b32 s23, s6, 16\ns_add_u32 s23, s23, {QB}\ns_add_u32 s24, s23, {KB-QB}\ns_lshl_b32 s25, s5, 11\ns_add_u32 s25, s25, s23\ns_add_u32 s25, s25, {VT-QB}")
    g("v_lshlrev_b32 v11, 5, v10\nv_lshl_add_u32 v11, v4, 3, v11")
    for c in range(2):
        for ts in range(4):
            for r in range(4):
                d=112+16*c+4*ts+r
                g(f"v_fma_f32 v{d}, -v{21+2*ts}, v{160+4*c+r}, v{d}\nv_mul_f32 v{d}, v{d}, v{20+2*ts}")
            d=112+16*c+4*ts
            g(f"v_cvt_pk_bf16_f32 v{d}, v{d}, v{d+1}\nv_cvt_pk_bf16_f32 v{d+1}, v{d+2}, v{d+3}\nbuffer_store_dwordx2 v[{d}:{d+1}], v11, s[8:11], s{23+c} offen offset:{ts*512}")
    g("v_lshrrev_b32 v11, 1, v4\nv_lshlrev_b32 v11, 8, v11\nv_lshl_add_u32 v11, v3, 4, v11\nv_and_b32 v12, 1, v4\nv_lshl_add_u32 v11, v12, 3, v11\ns_waitcnt lgkmcnt(0)")
    for ts in range(4):
        for r in range(4):
            d=144+4*ts+r
            g(f"v_fma_f32 v{d}, -v{33+8*ts+2*r}, v168, v{d}\nv_mul_f32 v{d}, v{d}, v{32+8*ts+2*r}")
        d=144+4*ts
        g(f"v_cvt_pk_bf16_f32 v{d}, v{d}, v{d+1}\nv_cvt_pk_bf16_f32 v{d+1}, v{d+2}, v{d+3}\nbuffer_store_dwordx2 v[{d}:{d+1}], v11, s[8:11], s25 offen offset:{ts*512}")
    g.lab("L_end_"+name); g("s_endpgm")
    g.o.append(kdesc(name,188,192))

def attn(g):
    name="attn_kernel"
    khead(g,name)
    g("s_cmp_ge_u32 s2, 512\ns_cbranch_scc1 L_end_"+name)
    srd(g,8,14,WSZ)
    g("v_lshrrev_b32 v1, 6, v0\nv_and_b32 v2, 31, v0\nv_bfe_u32 v3, v0, 5, 1\ns_nop 0\nv_readfirstlane_b32 s4, v1")
    g("s_lshr_b32 s5, s2, 5\ns_lshl_b32 s5, s5, 2\ns_add_u32 s5, s5, s4\ns_lshl_b32 s5, s5, 5\ns_and_b32 s6, s2, 7\ns_lshl_b32 s6, s6, 2\ns_bfe_u32 s7, s2, 0x20003\ns_add_u32 s6, s6, s7\ns_lshl_b32 s7, s6, 16")
    g(f"s_add_u32 s16, s7, {QB}\ns_add_u32 s17, s7, {KB}\ns_add_u32 s18, s7, {VT}\ns_waitcnt lgkmcnt(0)")
    g("v_add_u32 v4, s5, v2\nv_lshlrev_b32 v4, 5, v4\nv_lshl_add_u32 v4, v3, 4, v4\nbuffer_load_dwordx4 v[8:11], v4, s[8:11], s16 offen")
    g("v_and_b32 v5, 0x13, v2\nv_bfe_u32 v6, v2, 2, 1\nv_lshl_add_u32 v5, v6, 3, v5\nv_bfe_u32 v6, v2, 3, 1\nv_lshl_add_u32 v5, v6, 2, v5")
    g("s_sub_u32 s19, s5, 256\nv_add_u32 v5, s19, v5\nv_lshlrev_b32 v5, 5, v5\nv_lshl_add_u32 v5, v3, 4, v5\nv_add_u32 v5, s17, v5")
    g("s_mov_b32 s24, 0\ns_mov_b32 s25, 4096\ns_mov_b32 s26, 8192")
    for jb in range(9): g(f"buffer_load_dwordx4 v[{12+4*jb}:{15+4*jb}], v5, s[8:11], s{24+(jb>>2)} offen offset:{(jb&3)*1024}")
    g("v_and_b32 v6, 27, v2\nv_cmp_eq_u32 vcc, 16, v6\nv_mov_b32 v6, 0x3f803f80\ns_nop 0\nv_cndmask_b32 v6, 0, v6, vcc")
    for r in range(36): g(f"v_accvgpr_write_b32 a{r}, v6")
    g("v_mov_b32 v1, v6")
    g("v_lshlrev_b32 v6, 4, v2\nv_lshl_add_u32 v6, v3, 8, v6\ns_lshl_b32 s19, s19, 5\nv_add_u32 v6, s19, v6\nv_add_u32 v6, s18, v6\nv_cmp_gt_u32 vcc, 16, v2\ns_and_saveexec_b64 s[30:31], vcc")
    for i in range(9): g(f"buffer_load_dwordx4 a[{4*i}:{4*i+3}], v6, s[8:11], s{24+(i>>3)} offen offset:{(i&7)*512}")
    g("s_mov_b64 s[34:35], exec\ns_mov_b64 exec, s[30:31]\nv_mov_b32 v0, v6")
    for r in range(48,192): g(f"v_mov_b32 v{r}, 0")
    stage(g,1)
    g("s_waitcnt vmcnt(9)")
    for jb in range(9):
        g(f"v_mfma_f32_32x32x16_bf16 v[{48+16*jb}:{63+16*jb}], v[{12+4*jb}:{15+4*jb}], v[8:11], v[{48+16*jb}:{63+16*jb}]")
    g("s_nop 7\ns_nop 7")
    for r in range(12,48): g(f"v_mov_b32 v{r}, v1")
    g("s_mov_b64 exec, s[34:35]")
    for i in range(9,18): g(f"buffer_load_dwordx4 v[{12+4*(i-9)}:{15+4*(i-9)}], v0, s[8:11], s{24+(i>>3)} offen offset:{(i&7)*512}")
    g("s_mov_b64 exec, s[30:31]")
    g("v_mov_b32 v7, 0xf149f2ca\nv_lshlrev_b32 v6, 3, v3\nv_sub_u32 v6, v2, v6")
    for r in range(16):
        c=16*(r>>3)+(r&7)
        g(f"v_cmp_lt_i32 vcc, v6, {c}\nv_cmp_ge_i32 s[32:33], v6, {c}\ns_nop 0\nv_cndmask_b32 v{48+r}, v7, v{48+r}, vcc\nv_cndmask_b32 v{176+r}, v7, v{176+r}, s[32:33]")
    for jb in range(8):
        g(f"s_cmp_ge_u32 s5, {256-32*jb}\ns_cbranch_scc1 L_mk_done")
        for r in range(16): g(f"v_mov_b32 v{48+16*jb+r}, v7")
    g.lab("L_mk_done")
    g("v_max_f32 v4, v48, v49")
    for r in range(50,192,2): g(f"v_max3_f32 v4, v4, v{r}, v{r+1}")
    g("v_xor_b32 v5, 1, v3\nv_lshl_add_u32 v5, v5, 5, v2\nv_lshlrev_b32 v5, 2, v5\nds_bpermute_b32 v6, v5, v4\ns_mov_b32 s20, 0x3eb8aa3b\ns_waitcnt lgkmcnt(0)\nv_max_f32 v4, v4, v6\nv_mul_f32 v4, s20, v4")
    stage(g,2)
    for r in range(192,208): g(f"v_mov_b32 v{r}, 0")
    g("s_waitcnt vmcnt(9)")
    for i in range(18):
        if i==9: g("s_waitcnt vmcnt(0)")
        if 'noloop' in VAR and i>0: continue
        b=48+8*i; p=b
        for r in range(8): g(f"v_fma_f32 v{b+r}, v{b+r}, s20, -v4")
        for r in range(8): g(f"v_exp_f32 v{b+r}, v{b+r}")
        g("s_nop 0")
        for j in range(4): g(f"v_cvt_pk_bf16_f32 v{p+j}, v{b+2*j}, v{b+2*j+1}")
        g(f"s_nop 1\nv_mfma_f32_32x32x16_bf16 v[192:207], {'a' if i<9 else 'v'}[{4*i if i<9 else 12+4*(i-9)}:{4*i+3 if i<9 else 15+4*(i-9)}], v[{p}:{p+3}], v[192:207]")
    stage(g,3)
    g("s_nop 7\ns_nop 7\nv_rcp_f32 v4, v200\ns_nop 0")
    for r in range(8): g(f"v_mul_f32 v{192+r}, v{192+r}, v4")
    for j in range(4): g(f"v_cvt_pk_bf16_f32 v{8+j}, v{192+2*j}, v{193+2*j}")
    g(f"v_lshrrev_b32 v5, 4, v2\nv_lshlrev_b32 v5, 14, v5\nv_and_b32 v6, 15, v2\nv_lshl_add_u32 v5, v6, 4, v5\nv_lshl_add_u32 v5, v3, 3, v5\ns_lshl_b32 s19, s6, 9\ns_lshl_b32 s21, s5, 10\ns_add_u32 s19, s19, s21\ns_add_u32 s19, s19, {OB}")
    g("buffer_store_dwordx2 v[8:9], v5, s[8:11], s19 offen\nbuffer_store_dwordx2 v[10:11], v5, s[8:11], s19 offen offset:256")
    g.lab("L_end_"+name); g("s_endpgm")
    g.o.append(kdesc(name,208,36))
```

```python
from gen3 import *
def oproj(g,name,xres,xout,stats,final):
    khead(g,name)
    g("s_cmp_ge_u32 s2, 256\ns_cbranch_scc1 L_end_"+name)
    srd(g,8,14,WSZ)
    if final: srd(g,12,12,2048*512*2)
    g("v_lshrrev_b32 v1, 6, v0\nv_and_b32 v2, 63, v0\nv_and_b32 v3, 15, v2\nv_lshrrev_b32 v4, 4, v2\ns_nop 0\nv_readfirstlane_b32 s4, v1")
    g("s_lshr_b32 s5, s2, 1\ns_lshl_b32 s5, s5, 4\ns_and_b32 s6, s2, 1\ns_lshl_b32 s7, s6, 8\ns_lshl_b32 s16, s4, 6\ns_add_u32 s7, s7, s16")
    g(f"s_lshl_b32 s16, s7, 10\ns_add_u32 s16, s16, {WOT}\ns_lshl_b32 s17, s5, 10\ns_add_u32 s17, s17, {OB}\ns_waitcnt lgkmcnt(0)")
    g("v_lshlrev_b32 v5, 4, v2")
    for k in range(16):
        g(f"buffer_load_dwordx4 v[{16+4*k}:{19+4*k}], v5, s[8:11], s17 offen offset:{(k&3)*1024}")
        if k&3==3: g("v_add_u32 v5, 4096, v5")
    g("v_mov_b32 v6, v5")
    if True:
        g("v_lshlrev_b32 v6, 4, v2")
        for i in range(64):
            g(f"buffer_load_dwordx4 a[{4*i}:{4*i+3}], v6, s[8:11], s16 offen offset:{(i&3)*1024}")
            if i&3==3: g("v_add_u32 v6, 4096, v6")
    for rt in range(0):
        for k in range(16):
            a=(rt*16+k)*4
            g(f"buffer_load_dwordx4 a[{a}:{a+3}], v6, s[8:11], s16 offen offset:{k*64}")
        g("v_add_u32 v6, 16384, v6")
    g(f"v_lshlrev_b32 v7, 14, v4\nv_lshl_add_u32 v7, v3, 1, v7\ns_lshl_b32 s18, s7, 12\ns_lshl_b32 s19, s5, 1\ns_add_u32 s18, s18, s19\ns_add_u32 s19, s18, {xout}\ns_add_u32 s18, s18, {xres}\nv_mov_b32 v8, v7")
    for rt in range(4):
        for r in range(4):
            g(f"buffer_load_ushort v{96+4*rt+r}, v8, s[8:11], s18 offen\nv_add_u32 v8, {4096 if r<3 else 65536-3*4096}, v8")
    stage(g,1)
    for r in range(80,96): g(f"v_mov_b32 v{r}, 0")
    for rt in range(4):
        g(f"s_waitcnt vmcnt({min(63,16+48-16*rt)})")
        for k in range(16):
            if 'noloop' in VAR and k>0: continue
            a=(rt*16+k)*4
            g(f"v_mfma_f32_16x16x32_bf16 v[{80+4*rt}:{83+4*rt}], a[{a}:{a+3}], v[{16+4*k}:{19+4*k}], v[{80+4*rt}:{83+4*rt}]")
    stage(g,3)
    g("s_nop 7\ns_waitcnt vmcnt(0)")
    for i in range(16):
        bfr(g,80+i,80+i)
        g(f"v_lshlrev_b32 v{96+i}, 16, v{96+i}\nv_add_f32 v{80+i}, v{80+i}, v{96+i}")
    if final:
        g("v_add_u32 v8, s5, v3\nv_lshlrev_b32 v8, 10, v8\nv_lshl_add_u32 v8, v4, 3, v8\ns_lshl_b32 s16, s7, 1")
        for rt in range(4):
            g(f"v_cvt_pk_bf16_f32 v10, v{80+4*rt}, v{81+4*rt}\nv_cvt_pk_bf16_f32 v11, v{82+4*rt}, v{83+4*rt}\nbuffer_store_dwordx2 v[10:11], v8, s[12:15], s16 offen offset:{rt*32}\ns_nop 0")
    else:
        g("v_mov_b32 v10, 0\nv_mov_b32 v11, 0")
        for rt in range(4):
            for r in range(4):
                i=80+4*rt+r
                g(f"v_cvt_pk_bf16_f32 v12, v{i}, v{i}\nbuffer_store_short v12, v7, s[8:11], s19 offen\nv_add_u32 v7, {4096 if r<3 else 65536-3*4096}, v7\nv_lshlrev_b32 v13, 16, v12\nv_add_f32 v10, v10, v13\nv_fmac_f32 v11, v13, v13")
        g("v_lshlrev_b32 v12, 3, v0\nds_write_b64 v12, v[10:11]\ns_waitcnt lgkmcnt(0)\ns_barrier\ns_cmp_lg_u32 s4, 0\ns_cbranch_scc1 L_end_"+name)
        g("v_lshlrev_b32 v12, 3, v3")
        for i in range(16): g(f"ds_read_b64 v[{16+2*i}:{17+2*i}], v12 offset:{i*128}")
        g("s_waitcnt lgkmcnt(0)")
        for i in range(1,16): g(f"v_add_f32 v16, v16, v{16+2*i}\nv_add_f32 v17, v17, v{17+2*i}")
        g(f"s_lshl_b32 s16, s6, 14\ns_lshl_b32 s17, s5, 3\ns_add_u32 s16, s16, s17\ns_add_u32 s16, s16, {stats}\nv_cmp_gt_u32 vcc, 16, v2\ns_and_saveexec_b64 s[30:31], vcc\nbuffer_store_dwordx2 v[16:17], v12, s[8:11], s16 offen")
    g.lab("L_end_"+name); g("s_endpgm")
    g.o.append(kdesc(name,112,256))

def build():
    hdr=open('interleave_layers__ssm_conv_s4__sliding_block__prompt.s.ref').read().split('; Override')[0]
    L=[("prep_kernel",640,256,34816),("conv1_kernel",512,128,50816),("qkv1_kernel",256,256,65536),("attn_kernel",512,256,0),("oproj1_kernel",256,256,2048),
       ("conv2_kernel",512,128,50816),("qkv2_kernel",256,256,65536),("attn_kernel",512,256,0),("oproj2_kernel",256,256,2048)]
    s=hdr+''.join(f"; @launch kernel={n} grid=({gx},1,1) block=({b},1,1) lds={l}\n" for n,gx,b,l in L)
    s+='.amdgcn_target "amdgcn-amd-amdhsa--gfx950"\n.text\n'
    g=G(); prep(g); conv(g,"conv1_kernel",XT[0],XT[1],STATS[0]); conv(g,"conv2_kernel",XT[2],XT[3],STATS[1])
    qkv(g,"qkv1_kernel",XT[1]); qkv(g,"qkv2_kernel",XT[3]); attn(g)
    oproj(g,"oproj1_kernel",XT[1],XT[2],STATS[1],False); oproj(g,"oproj2_kernel",XT[3],0,0,True)
    import re
    for l in g.o:
        m=re.search(r'buffer_.*offset:(\d+)',l)
        assert not m or int(m.group(1))<4096, l
        m=re.search(r'ds_.*offset:(\d+)',l)
        assert not m or int(m.group(1))<65536, l
    open(os.environ.get('OUT','interleave_layers__ssm_conv_s4__sliding_block__prompt.s'),'w').write(s+'\n'.join(g.o)+'\n')
if __name__=="__main__": build()
```

```python
import os
VAR=set(os.environ.get('VAR','').split(','))
MB=1<<20
XT=[0,2*MB,4*MB,6*MB]; STATS=[8*MB,8*MB+65536]; KBUF=9*MB; WQT=13*MB; WOT=15*MB
QB=16*MB; KB=18*MB; VT=20*MB; OB=22*MB; WSZ=24*MB
class G:
    def __init__(s): s.o=[]
    def __call__(s,x):
        for l in x.strip('\n').split('\n'):
            if 'kA' in VAR and 'v_mfma' in l: continue
            if 'kB' in VAR and l.strip().startswith('ds_'): continue
            if 'qw' in VAR and 'buffer_load_dwordx4 a[' in l: continue
            if 'kC' in VAR and 'exec' in l: continue
            s.o.append('    '+l.strip())
    def lab(s,l): s.o.append(l+':')
def stage(g,n):
    if f's{n}' in VAR: g('s_waitcnt vmcnt(0) lgkmcnt(0)\ns_endpgm')
def srd(g,d,slot,nbytes):
    g(f"s_load_dwordx2 s[{d}:{d+1}], s[0:1], {slot*8}")
    g(f"s_mov_b32 s{d+2}, {nbytes}\ns_mov_b32 s{d+3}, 0x00020000")
def khead(g,name):
    g.o.append(f".globl {name}\n.p2align 8\n.type {name},@function\n{name}:")
    if 'empty' in VAR: g("s_endpgm")
def kdesc(name,vg,ag=0):
    acc=(vg+3)//4*4
    tot=acc+ag if ag else vg
    return f""".section .rodata,"a"
.p2align 6
.amdhsa_kernel {name}
  .amdhsa_next_free_vgpr {tot}
  .amdhsa_next_free_sgpr 96
  .amdhsa_accum_offset {acc}
  .amdhsa_group_segment_fixed_size 0
  .amdhsa_kernarg_size 120
  .amdhsa_user_sgpr_count 2
  .amdhsa_user_sgpr_kernarg_segment_ptr 1
  .amdhsa_system_sgpr_workgroup_id_x 1
.end_amdhsa_kernel
.text
"""
def transp8(g,inb,outb,slo,shi):
    for c in range(8):
        for j in range(4):
            g(f"v_perm_b32 v{outb+4*c+j}, v{inb+4*(2*j+1)+(c>>1)}, v{inb+4*(2*j)+(c>>1)}, s{shi if c&1 else slo}")
def cexp(g,dr,di,ar,ai,L,t0,t1,sl2e,s2pi,sL):
    g(f"s_cmp_eq_u32 s29, 0\ns_mov_b32 s{sL}, {float(L[0])!r}\ns_mov_b32 s31, {float(L[1])!r}\ns_cselect_b32 s{sL}, s{sL}, s31")
    g(f"v_mul_f32 v{t0}, s{sL}, v{ar}\nv_mul_f32 v{t1}, s{sL}, v{ai}")
    g(f"v_mul_f32 v{t0}, s{sl2e}, v{t0}\nv_mul_f32 v{t1}, s{s2pi}, v{t1}")
    g(f"v_exp_f32 v{t0}, v{t0}\nv_fract_f32 v{t1}, v{t1}\ns_nop 0")
    g(f"v_cos_f32 v{dr}, v{t1}\nv_sin_f32 v{di}, v{t1}\ns_nop 0")
    g(f"v_mul_f32 v{dr}, v{dr}, v{t0}\nv_mul_f32 v{di}, v{di}, v{t0}")
def cmul(g,dr,di,ar,ai,br,bi,t):
    g(f"v_mul_f32 v{t}, v{ai}, v{bi}\nv_mul_f32 v{t+1}, v{ai}, v{br}")
    g(f"v_fma_f32 v{t}, v{ar}, v{br}, -v{t}\nv_fma_f32 v{di}, v{ar}, v{bi}, v{t+1}\nv_mov_b32 v{dr}, v{t}")

def prep(g):
    khead(g,"prep_kernel")
    srd(g,8,14,WSZ)
    g("s_mov_b32 s20, 0x05040100\ns_mov_b32 s21, 0x07060302")
    g("v_lshrrev_b32 v1, 6, v0\nv_and_b32 v2, 63, v0")
    g("s_cmp_lt_u32 s2, 512\ns_cbranch_scc1 L_kgen")
    g("s_cmp_lt_u32 s2, 576\ns_cbranch_scc1 L_xt")
    g("s_cmp_lt_u32 s2, 640\ns_cbranch_scc0 L_prep_end")
    g("s_sub_u32 s3, s2, 576\ns_cmp_lt_u32 s3, 48\ns_cbranch_scc0 L_wo")
    srd(g,12,10,512*1536*2)
    g(f"s_mov_b32 s22, 3072\ns_mov_b32 s23, {WQT}\ns_mul_i32 s24, s3, 21846\ns_lshr_b32 s24, s24, 16")
    g("s_lshr_b32 s24, s24, 2\ns_mul_i32 s25, s24, 12\ns_sub_u32 s25, s3, s25\ns_branch L_wt")
    g.lab("L_wo")
    srd(g,12,11,512*512*2)
    g(f"s_sub_u32 s3, s3, 48\ns_mov_b32 s22, 1024\ns_mov_b32 s23, {WOT}\ns_lshr_b32 s24, s3, 2\ns_and_b32 s25, s3, 3")
    g.lab("L_wt")
    if 'pw' in VAR: g("s_endpgm")
    g("s_waitcnt lgkmcnt(0)")
    g("v_and_b32 v3, 15, v0\nv_lshrrev_b32 v4, 4, v0")
    g("s_lshl_b32 s26, s24, 7\ns_lshl_b32 s27, s25, 7")
    g("v_lshlrev_b32 v5, 3, v4\nv_add_u32 v5, s26, v5")
    g("v_lshlrev_b32 v6, 3, v3\nv_add_u32 v6, s27, v6")
    g("v_mul_lo_u32 v7, v5, s22\nv_lshl_add_u32 v7, v6, 1, v7")
    for i in range(8):
        g(f"buffer_load_dwordx4 v[{16+4*i}:{19+4*i}], v7, s[12:15], 0 offen\nv_add_u32 v7, s22, v7")
    g("v_lshrrev_b32 v8, 4, v6\nv_lshlrev_b32 v8, 4, v8\nv_lshrrev_b32 v9, 5, v5\nv_add_u32 v8, v8, v9\nv_lshlrev_b32 v8, 10, v8\nv_bfe_u32 v9, v5, 3, 2\nv_lshlrev_b32 v9, 4, v9\nv_and_b32 v10, 15, v6\nv_add_u32 v9, v9, v10\nv_lshl_add_u32 v8, v9, 4, v8\ns_waitcnt vmcnt(0)")
    transp8(g,16,48,20,21)
    for c in range(8):
        g(f"buffer_store_dwordx4 v[{48+4*c}:{51+4*c}], v8, s[8:11], s23 offen offset:{c*16}")
    g("s_branch L_prep_end")
    g.lab("L_xt")
    if 'px' in VAR: g("s_endpgm")
    srd(g,12,0,2048*512*2)
    g("s_sub_u32 s3, s2, 512\ns_lshl_b32 s3, s3, 5\ns_waitcnt lgkmcnt(0)")
    g("v_lshlrev_b32 v3, 3, v1\nv_add_u32 v3, s3, v3")
    g("v_lshlrev_b32 v4, 10, v3\nv_lshl_add_u32 v4, v2, 4, v4")
    for i in range(8):
        if i==4: g("v_add_u32 v4, 4096, v4")
        g(f"buffer_load_dwordx4 v[{16+4*i}:{19+4*i}], v4, s[12:15], 0 offen offset:{(i&3)*1024}")
    g("v_lshlrev_b32 v5, 15, v2\nv_lshl_add_u32 v5, v3, 1, v5\ns_waitcnt vmcnt(0)")
    transp8(g,16,48,20,21)
    for c in range(8):
        g(f"buffer_store_dwordx4 v[{48+4*c}:{51+4*c}], v5, s[8:11], 0 offen\nv_add_u32 v5, 4096, v5")
    for i in range(8):
        g(f"v_mov_b32 v{80+i}, 0\nv_mov_b32 v{88+i}, 0")
        for j in range(4):
            r=16+4*i+j
            g(f"v_lshlrev_b32 v6, 16, v{r}\nv_and_b32 v7, 0xffff0000, v{r}")
            g(f"v_add_f32 v{80+i}, v{80+i}, v6\nv_fmac_f32 v{88+i}, v6, v6\nv_add_f32 v{80+i}, v{80+i}, v7\nv_fmac_f32 v{88+i}, v7, v7")
    for md in ["row_shr:1 row_mask:0xf","row_shr:2 row_mask:0xf","row_shr:4 row_mask:0xf","row_shr:8 row_mask:0xf","row_bcast:15 row_mask:0xa","row_bcast:31 row_mask:0xc"]:
        for i in range(16):
            g(f"v_add_f32_dpp v{80+i}, v{80+i}, v{80+i} {md} bank_mask:0xf bound_ctrl:0")
    g("v_lshlrev_b32 v5, 3, v3\nv_mov_b32 v8, 0\nv_mov_b32 v9, 0\nv_cmp_eq_u32 vcc, 63, v2\ns_and_saveexec_b64 s[30:31], vcc")
    g(f"s_mov_b32 s23, {STATS[0]}")
    for i in range(8):
        g(f"v_mov_b32 v6, v{80+i}\nv_mov_b32 v7, v{88+i}")
        g(f"buffer_store_dwordx2 v[6:7], v5, s[8:11], s23 offen offset:{i*8}")
        g(f"v_add_u32 v10, 16384, v5\nbuffer_store_dwordx2 v[8:9], v10, s[8:11], s23 offen offset:{i*8}\ns_nop 1")
    g("s_branch L_prep_end")
    g.lab("L_kgen")
    if 'pk' in VAR: g("s_endpgm")
    for k in range(6): srd(g,32+4*k,1+k,512*128*2)
    srd(g,56,7,1024)
    g("s_mov_b32 s24, 0x3fb8aa3b\ns_mov_b32 s25, 0x3e22f983")
    g("s_and_b32 s29, s2, 1\ns_andn2_b32 s30, s2, 1\nv_lshrrev_b32 v3, 1, v1\nv_add_u32 v3, s30, v3")
    g("v_and_b32 v4, 1, v1\nv_lshl_add_u32 v5, v4, 6, v2")
    g("v_lshl_add_u32 v6, v3, 7, v5\nv_lshlrev_b32 v6, 1, v6\nv_lshlrev_b32 v7, 1, v3\ns_waitcnt lgkmcnt(0)")
    for k in range(6): g(f"buffer_load_ushort v{10+k}, v6, s[{32+4*k}:{35+4*k}], 0 offen")
    g("buffer_load_ushort v16, v7, s[56:59], 0 offen\ns_waitcnt vmcnt(0)")
    if 'k1' in VAR: g("s_endpgm")
    for k in range(7): g(f"v_lshlrev_b32 v{10+k}, 16, v{10+k}")
    g("v_mul_f32 v16, s24, v16\nv_exp_f32 v16, v16\ns_nop 0\nv_cvt_pk_bf16_f32 v16, v16, v16\nv_lshlrev_b32 v16, 16, v16")
    g("v_mul_f32 v10, v16, v10\nv_mul_f32 v11, v16, v11\nv_mul_f32 v12, v16, v12\nv_mul_f32 v13, v16, v13")
    cmul(g,17,18,14,15,12,13,20)
    g("s_mov_b32 s26, 8704\nv_mul_lo_u32 v8, v1, s26\nv_lshl_add_u32 v9, v2, 3, v8")
    g("v_and_b32 v22, 15, v2\nv_lshrrev_b32 v23, 4, v2\ns_mov_b32 s26, 528\nv_mul_lo_u32 v24, v22, s26\nv_lshl_add_u32 v24, v23, 4, v24\nv_add_u32 v24, v8, v24")
    for R,(base,st) in enumerate([((0,512),(1,4)),((256,1024),(2,8))]):
        cexp(g,30,31,10,11,st,20,21,24,25,26)
        cexp(g,32,33,10,11,(16*st[0],16*st[1]),20,21,24,25,26)
        if True:
            cexp(g,36,37,10,11,base,20,21,24,25,26)
            cmul(g,34,35,17,18,36,37,20)
        g("v_mov_b32 v50, 1.0\nv_mov_b32 v51, 0\nv_mov_b32 v48, v34\nv_sub_f32 v49, 0, v35\nv_sub_f32 v33, 0, v33")
        for r in range(15):
            for (o,m,t) in ((48,32,20),(50,30,22)):
                a0=o+4*r
                g(f"v_pk_mul_f32 v[{t}:{t+1}], v[{a0}:{a0+1}], v[{m}:{m+1}] op_sel:[0,0] op_sel_hi:[0,1]")
            for (o,m,t) in ((48,32,20),(50,30,22)):
                a0=o+4*r
                g(f"v_pk_fma_f32 v[{a0+4}:{a0+5}], v[{a0}:{a0+1}], v[{m}:{m+1}], v[{t}:{t+1}] op_sel:[1,1,0] op_sel_hi:[1,0,1] neg_lo:[1,0,0]")
        for q in range(32):
            x=48+2*q; t=36+2*(q&1)
            g(f"v_cvt_pk_bf16_f32 v{40+(q&1)}, v{x}, v{x+1}\nv_lshlrev_b32 v{t}, 16, v{40+(q&1)}\nv_and_b32 v{t+1}, 0xffff0000, v{40+(q&1)}")
            g(f"v_pk_add_f32 v[{t}:{t+1}], v[{x}:{x+1}], v[{t}:{t+1}] neg_lo:[0,1] neg_hi:[0,1]\nv_mov_b32 v{x}, v{40+(q&1)}\nv_cvt_pk_bf16_f32 v{x+1}, v{t}, v{t+1}")
        if 'k3' in VAR: g("s_endpgm")
        a=144+4*R
        g(f"v_mov_b32 v{a}, 0\nv_mov_b32 v{a+1}, 0\nv_mov_b32 v{a+2}, 0\nv_mov_b32 v{a+3}, 0")
        for ph in range(2):
            for r in range(16):
                g(f"ds_write_b64 v9, v[{48+4*r+2*ph}:{49+4*r+2*ph}] offset:{r*528}")
            g("s_waitcnt lgkmcnt(0)")
            for S in range(8):
                b=(112 if ph==0 else 48)+4*S
                g(f"ds_read_b128 v[{b}:{b+3}], v24 offset:{S*64}")
            if ph==0: g("s_waitcnt lgkmcnt(0)")
        for S in range(8):
            A=112+4*S; B=48+4*S; w=152+4*(S&1)
            g(f"v_mov_b32 v{w}, v{A+1}\nv_mov_b32 v{w+1}, v{A}\nv_mov_b32 v{w+2}, v{A+3}\nv_mov_b32 v{w+3}, v{A+2}\ns_waitcnt lgkmcnt({7-S})")
            g(f"v_mfma_f32_16x16x32_bf16 v[{a}:{a+3}], v[{A}:{A+3}], v[{B}:{B+3}], v[{a}:{a+3}]\ns_nop 1")
            g(f"v_mfma_f32_16x16x32_bf16 v[{a}:{a+3}], v[{w}:{w+3}], v[{B}:{B+3}], v[{a}:{a+3}]")
    if 'k2' in VAR: g("s_endpgm")
    g("s_nop 7\ns_nop 3\nv_and_b32 v22, 15, v2\nv_lshrrev_b32 v23, 4, v2\nv_lshlrev_b32 v25, 8, v23\nv_lshl_add_u32 v25, v22, 2, v25\nv_add_u32 v25, v8, v25")
    for R in range(2):
        for r in range(4): g(f"ds_write_b32 v25, v{144+4*R+r} offset:{R*1024+r*64}")
    g("s_waitcnt lgkmcnt(0)\ns_barrier")
    g("v_and_b32 v26, 2, v1\ns_mov_b32 s26, 8704\nv_mul_lo_u32 v26, v26, s26\ns_mov_b32 s27, 0x7fff\ns_mov_b32 s28, 128")
    g("s_lshl_b32 s30, s29, 1\ns_add_u32 s31, s30, 1\ns_cmp_eq_u32 s29, 0\ns_cselect_b32 s22, 63, 127\ns_lshl_b32 s23, s29, 6\nv_and_b32 v30, s22, v5\nv_add_u32 v30, s23, v30")
    for ps in range(2):
        if ps==1: g("s_cmp_eq_u32 s29, 0\ns_cbranch_scc1 L_prep_end\nv_and_b32 v30, 63, v5\nv_add_u32 v30, 192, v30")
        g("v_lshlrev_b32 v27, 3, v30\nv_or_b32 v27, 128, v27\nv_ffbh_u32 v27, v27\nv_sub_u32 v28, 24, v27")
        g("v_subrev_u32 v29, s30, v28\nv_lshl_add_u32 v29, v29, 10, v26\nv_min_u32 v27, 1, v28\nv_lshlrev_b32 v27, 9, v27\nv_sub_u32 v29, v29, v27")
        g("v_lshlrev_b32 v31, v28, 1\nv_add_u32 v31, -1, v31\nv_add_u32 v28, 1, v28\nv_lshlrev_b32 v32, 4, v30")
        for e in range(8):
            g(f"v_add_u32 v27, {2*e}, v32\nv_bfe_u32 v33, v27, v28, 1\nv_add3_u32 v27, v27, v31, v33\nv_lshrrev_b32 v27, v28, v27\nv_lshl_add_u32 v27, v27, 2, v29")
            g(f"ds_read_b32 v{40+e}, v27\nds_read_b32 v{56+e}, v27 offset:8704")
        g("s_waitcnt lgkmcnt(0)")
        for e in range(8): g(f"v_add_f32 v{40+e}, v{40+e}, v{56+e}")
        for j in range(4):
            e0=7-2*j; e1=e0-1
            g(f"v_cvt_pk_bf16_f32 v{72+j}, v{40+e0}, v{40+e1}")
        g(f"v_lshlrev_b32 v27, 13, v3\nv_lshl_add_u32 v27, v30, 4, v27\ns_mov_b32 s23, {KBUF}")
        g("buffer_store_dwordx4 v[72:75], v27, s[8:11], s23 offen\ns_nop 1")
    g.lab("L_prep_end")
    g("s_endpgm")
    g.o.append(kdesc("prep_kernel",160))
```

```python
import os
VAR=set(os.environ.get('VAR','').split(','))
MB=1<<20
XT=[0,2*MB,4*MB,6*MB]; STATS=[8*MB,8*MB+65536]; KBUF=9*MB; WQT=13*MB; WOT=15*MB
QB=16*MB; KB=18*MB; VT=20*MB; OB=22*MB; WSZ=24*MB
class G:
    def __init__(s): s.o=[]
    def __call__(s,x):
        for l in x.strip('\n').split('\n'):
            if 'kA' in VAR and 'v_mfma' in l: continue
            if 'kB' in VAR and l.strip().startswith('ds_'): continue
            if 'qw' in VAR and 'buffer_load_dwordx4 a[' in l: continue
            if 'kC' in VAR and 'exec' in l: continue
            s.o.append('    '+l.strip())
    def lab(s,l): s.o.append(l+':')
def stage(g,n):
    if f's{n}' in VAR: g('s_waitcnt vmcnt(0) lgkmcnt(0)\ns_endpgm')
def tm(g,w,i):
    if 'tm'+w not in VAR: return
    if i==0: g("v_readfirstlane_b32 s86, v0\ns_lshr_b32 s86, s86, 6")
    g(f"s_memtime s[{64+2*i}:{65+2*i}]")
def tmout(g,w):
    if 'tm'+w not in VAR: return
    g("s_mov_b64 exec, -1\ns_waitcnt vmcnt(0) lgkmcnt(0)\ns_memtime s[82:83]\ns_waitcnt lgkmcnt(0)")
    g(f"s_lshl_b32 s84, s2, 2\ns_add_u32 s84, s84, s86\ns_lshl_b32 s84, s84, 6\ns_add_u32 s84, s84, {8*MB+262144}\nv_mov_b32 v1, 0")
    for i in range(10): g(f"s_sub_u32 s85, s{64+2*i}, s64\nv_mov_b32 v2, s85\nbuffer_store_dword v2, v1, s[8:11], s84 offen offset:{4*i}")
def srd(g,d,slot,nbytes):
    g(f"s_load_dwordx2 s[{d}:{d+1}], s[0:1], {slot*8}")
    g(f"s_mov_b32 s{d+2}, {nbytes}\ns_mov_b32 s{d+3}, 0x00020000")
def khead(g,name):
    g.o.append(f".globl {name}\n.p2align 8\n.type {name},@function\n{name}:")
    if 'empty' in VAR: g("s_endpgm")
def kdesc(name,vg,ag=0):
    acc=(vg+3)//4*4
    tot=acc+ag if ag else vg
    return f""".section .rodata,"a"
.p2align 6
.amdhsa_kernel {name}
  .amdhsa_next_free_vgpr {tot}
  .amdhsa_next_free_sgpr 96
  .amdhsa_accum_offset {acc}
  .amdhsa_group_segment_fixed_size 0
  .amdhsa_kernarg_size 120
  .amdhsa_user_sgpr_count 2
  .amdhsa_user_sgpr_kernarg_segment_ptr 1
  .amdhsa_system_sgpr_workgroup_id_x 1
.end_amdhsa_kernel
.text
"""
def transp8(g,inb,outb,slo,shi):
    for c in range(8):
        for j in range(4):
            g(f"v_perm_b32 v{outb+4*c+j}, v{inb+4*(2*j+1)+(c>>1)}, v{inb+4*(2*j)+(c>>1)}, s{shi if c&1 else slo}")
def cexp(g,dr,di,ar,ai,L,t0,t1,sl2e,s2pi,sL):
    g(f"s_cmp_eq_u32 s29, 0\ns_mov_b32 s{sL}, {float(L[0])!r}\ns_mov_b32 s31, {float(L[1])!r}\ns_cselect_b32 s{sL}, s{sL}, s31")
    g(f"v_mul_f32 v{t0}, s{sL}, v{ar}\nv_mul_f32 v{t1}, s{sL}, v{ai}")
    g(f"v_mul_f32 v{t0}, s{sl2e}, v{t0}\nv_mul_f32 v{t1}, s{s2pi}, v{t1}")
    g(f"v_exp_f32 v{t0}, v{t0}\nv_fract_f32 v{t1}, v{t1}\ns_nop 0")
    g(f"v_cos_f32 v{dr}, v{t1}\nv_sin_f32 v{di}, v{t1}\ns_nop 0")
    g(f"v_mul_f32 v{dr}, v{dr}, v{t0}\nv_mul_f32 v{di}, v{di}, v{t0}")
def cmul(g,dr,di,ar,ai,br,bi,t):
    g(f"v_mul_f32 v{t}, v{ai}, v{bi}\nv_mul_f32 v{t+1}, v{ai}, v{br}")
    g(f"v_fma_f32 v{t}, v{ar}, v{br}, -v{t}\nv_fma_f32 v{di}, v{ar}, v{bi}, v{t+1}\nv_mov_b32 v{dr}, v{t}")

def prep(g):
    khead(g,"prep_kernel")
    srd(g,8,14,WSZ)
    g("s_mov_b32 s20, 0x05040100\ns_mov_b32 s21, 0x07060302")
    tm(g,'p',0)
    g("v_lshrrev_b32 v1, 6, v0\nv_and_b32 v2, 63, v0")
    g("s_cmp_lt_u32 s2, 512\ns_cbranch_scc1 L_kgen")
    g("s_cmp_lt_u32 s2, 576\ns_cbranch_scc1 L_xt")
    g("s_cmp_lt_u32 s2, 640\ns_cbranch_scc0 L_prep_end")
    g("s_sub_u32 s3, s2, 576\ns_cmp_lt_u32 s3, 48\ns_cbranch_scc0 L_wo")
    srd(g,12,10,512*1536*2)
    g(f"s_mov_b32 s22, 3072\ns_mov_b32 s23, {WQT}\ns_mul_i32 s24, s3, 21846\ns_lshr_b32 s24, s24, 16")
    g("s_lshr_b32 s24, s24, 2\ns_mul_i32 s25, s24, 12\ns_sub_u32 s25, s3, s25\ns_branch L_wt")
    g.lab("L_wo")
    srd(g,12,11,512*512*2)
    g(f"s_sub_u32 s3, s3, 48\ns_mov_b32 s22, 1024\ns_mov_b32 s23, {WOT}\ns_lshr_b32 s24, s3, 2\ns_and_b32 s25, s3, 3")
    g.lab("L_wt")
    if 'pw' in VAR: g("s_endpgm")
    g("s_waitcnt lgkmcnt(0)")
    g("v_and_b32 v3, 15, v0\nv_lshrrev_b32 v4, 4, v0")
    g("s_lshl_b32 s26, s24, 7\ns_lshl_b32 s27, s25, 7")
    g("v_lshlrev_b32 v5, 3, v4\nv_add_u32 v5, s26, v5")
    g("v_lshlrev_b32 v6, 3, v3\nv_add_u32 v6, s27, v6")
    g("v_mul_lo_u32 v7, v5, s22\nv_lshl_add_u32 v7, v6, 1, v7")
    for i in range(8):
        g(f"buffer_load_dwordx4 v[{16+4*i}:{19+4*i}], v7, s[12:15], 0 offen\nv_add_u32 v7, s22, v7")
    g("v_lshrrev_b32 v8, 4, v6\nv_lshlrev_b32 v8, 4, v8\nv_lshrrev_b32 v9, 5, v5\nv_add_u32 v8, v8, v9\nv_lshlrev_b32 v8, 10, v8\nv_bfe_u32 v9, v5, 3, 2\nv_lshlrev_b32 v9, 4, v9\nv_and_b32 v10, 15, v6\nv_add_u32 v9, v9, v10\nv_lshl_add_u32 v8, v9, 4, v8\ns_waitcnt vmcnt(0)")
    transp8(g,16,48,20,21)
    for c in range(8):
        g(f"buffer_store_dwordx4 v[{48+4*c}:{51+4*c}], v8, s[8:11], s23 offen offset:{c*16}")
    g("s_branch L_prep_end")
    g.lab("L_xt")
    if 'px' in VAR: g("s_endpgm")
    srd(g,12,0,2048*512*2)
    g("s_sub_u32 s3, s2, 512\ns_lshl_b32 s3, s3, 5\ns_waitcnt lgkmcnt(0)")
    g("v_lshlrev_b32 v3, 3, v1\nv_add_u32 v3, s3, v3")
    g("v_lshlrev_b32 v4, 10, v3\nv_lshl_add_u32 v4, v2, 4, v4")
    for i in range(8):
        if i==4: g("v_add_u32 v4, 4096, v4")
        g(f"buffer_load_dwordx4 v[{16+4*i}:{19+4*i}], v4, s[12:15], 0 offen offset:{(i&3)*1024}")
    g("v_lshlrev_b32 v5, 15, v2\nv_lshl_add_u32 v5, v3, 1, v5\ns_waitcnt vmcnt(0)")
    transp8(g,16,48,20,21)
    for c in range(8):
        g(f"buffer_store_dwordx4 v[{48+4*c}:{51+4*c}], v5, s[8:11], 0 offen\nv_add_u32 v5, 4096, v5")
    for i in range(8):
        g(f"v_mov_b32 v{80+i}, 0\nv_mov_b32 v{88+i}, 0")
        for j in range(4):
            r=16+4*i+j
            g(f"v_lshlrev_b32 v6, 16, v{r}\nv_and_b32 v7, 0xffff0000, v{r}")
            g(f"v_add_f32 v{80+i}, v{80+i}, v6\nv_fmac_f32 v{88+i}, v6, v6\nv_add_f32 v{80+i}, v{80+i}, v7\nv_fmac_f32 v{88+i}, v7, v7")
    for md in ["row_shr:1 row_mask:0xf","row_shr:2 row_mask:0xf","row_shr:4 row_mask:0xf","row_shr:8 row_mask:0xf","row_bcast:15 row_mask:0xa","row_bcast:31 row_mask:0xc"]:
        for i in range(16):
            g(f"v_add_f32_dpp v{80+i}, v{80+i}, v{80+i} {md} bank_mask:0xf bound_ctrl:0")
    g("v_lshlrev_b32 v5, 1, v3\nv_mov_b32 v8, 0\nv_mov_b32 v9, 0\nv_cmp_eq_u32 vcc, 63, v2\ns_and_saveexec_b64 s[30:31], vcc")
    g(f"s_mov_b32 s23, {STATS[0]}")
    for i in range(8):
        g(f"v_mov_b32 v6, v{80+i}\nv_mov_b32 v7, v{88+i}")
        g(f"buffer_store_dwordx2 v[6:7], v5, s[8:11], s23 offen offset:{(i&1)*8}")
        g("s_nop 1")
        if i&1: g("v_add_u32 v5, 4096, v5")
    g("s_branch L_prep_end")
    g.lab("L_kgen")
    if 'pk' in VAR: g("s_endpgm")
    for k in range(6): srd(g,32+4*k,1+k,512*128*2)
    srd(g,56,7,1024)
    g("s_mov_b32 s24, 0x3fb8aa3b\ns_mov_b32 s25, 0x3e22f983")
    g("s_and_b32 s29, s2, 1\ns_andn2_b32 s30, s2, 1\nv_lshrrev_b32 v3, 1, v1\nv_add_u32 v3, s30, v3")
    g("v_and_b32 v4, 1, v1\nv_lshl_add_u32 v5, v4, 6, v2")
    g("v_lshl_add_u32 v6, v3, 7, v5\nv_lshlrev_b32 v6, 1, v6\nv_lshlrev_b32 v7, 1, v3\ns_waitcnt lgkmcnt(0)")
    for k in range(6): g(f"buffer_load_ushort v{10+k}, v6, s[{32+4*k}:{35+4*k}], 0 offen")
    g("buffer_load_ushort v16, v7, s[56:59], 0 offen\ns_waitcnt vmcnt(0)")
    if 'k1' in VAR: g("s_endpgm")
    tm(g,'p',1)
    for k in range(7): g(f"v_lshlrev_b32 v{10+k}, 16, v{10+k}")
    g("v_mul_f32 v16, s24, v16\nv_exp_f32 v16, v16\ns_nop 0\nv_cvt_pk_bf16_f32 v16, v16, v16\nv_lshlrev_b32 v16, 16, v16")
    g("v_mul_f32 v10, v16, v10\nv_mul_f32 v11, v16, v11\nv_mul_f32 v12, v16, v12\nv_mul_f32 v13, v16, v13")
    cmul(g,17,18,14,15,12,13,20)
    g("s_mov_b32 s26, 8704\nv_mul_lo_u32 v8, v1, s26\nv_lshl_add_u32 v9, v2, 3, v8")
    g("v_and_b32 v22, 15, v2\nv_lshrrev_b32 v23, 4, v2\ns_mov_b32 s26, 528\nv_mul_lo_u32 v24, v22, s26\nv_lshl_add_u32 v24, v23, 4, v24\nv_add_u32 v24, v8, v24")
    for R,(base,st) in enumerate([((0,512),(1,4)),((256,1024),(2,8))]):
        cexp(g,30,31,10,11,st,20,21,24,25,26)
        cexp(g,32,33,10,11,(16*st[0],16*st[1]),20,21,24,25,26)
        if True:
            cexp(g,36,37,10,11,base,20,21,24,25,26)
            cmul(g,34,35,17,18,36,37,20)
        g("v_mov_b32 v50, 1.0\nv_mov_b32 v51, 0\nv_mov_b32 v48, v34\nv_sub_f32 v49, 0, v35\nv_sub_f32 v33, 0, v33")
        for r in range(15):
            for (o,m,t) in ((48,32,20),(50,30,22)):
                a0=o+4*r
                g(f"v_pk_mul_f32 v[{t}:{t+1}], v[{a0}:{a0+1}], v[{m}:{m+1}] op_sel:[0,0] op_sel_hi:[0,1]")
            for (o,m,t) in ((48,32,20),(50,30,22)):
                a0=o+4*r
                g(f"v_pk_fma_f32 v[{a0+4}:{a0+5}], v[{a0}:{a0+1}], v[{m}:{m+1}], v[{t}:{t+1}] op_sel:[1,1,0] op_sel_hi:[1,0,1] neg_lo:[1,0,0]")
        for q in range(32):
            x=48+2*q; t=36+2*(q&1)
            g(f"v_cvt_pk_bf16_f32 v{40+(q&1)}, v{x}, v{x+1}\nv_lshlrev_b32 v{t}, 16, v{40+(q&1)}\nv_and_b32 v{t+1}, 0xffff0000, v{40+(q&1)}")
            g(f"v_pk_add_f32 v[{t}:{t+1}], v[{x}:{x+1}], v[{t}:{t+1}] neg_lo:[0,1] neg_hi:[0,1]\nv_mov_b32 v{x}, v{40+(q&1)}\nv_cvt_pk_bf16_f32 v{x+1}, v{t}, v{t+1}")
        if 'k3' in VAR: g("s_endpgm")
        tm(g,'p',2+2*R)
        a=144+4*R
        g(f"v_mov_b32 v{a}, 0\nv_mov_b32 v{a+1}, 0\nv_mov_b32 v{a+2}, 0\nv_mov_b32 v{a+3}, 0")
        for ph in range(2):
            for r in range(16):
                g(f"ds_write_b64 v9, v[{48+4*r+2*ph}:{49+4*r+2*ph}] offset:{r*528}")
            g("s_waitcnt lgkmcnt(0)")
            for S in range(8):
                b=(112 if ph==0 else 48)+4*S
                g(f"ds_read_b128 v[{b}:{b+3}], v24 offset:{S*64}")
            if ph==0: g("s_waitcnt lgkmcnt(0)")
        for S in range(8):
            A=112+4*S; B=48+4*S; w=152+4*(S&1)
            g(f"v_mov_b32 v{w}, v{A+1}\nv_mov_b32 v{w+1}, v{A}\nv_mov_b32 v{w+2}, v{A+3}\nv_mov_b32 v{w+3}, v{A+2}\ns_waitcnt lgkmcnt({7-S})")
            g(f"v_mfma_f32_16x16x32_bf16 v[{a}:{a+3}], v[{A}:{A+3}], v[{B}:{B+3}], v[{a}:{a+3}]\ns_nop 1")
            g(f"v_mfma_f32_16x16x32_bf16 v[{a}:{a+3}], v[{w}:{w+3}], v[{B}:{B+3}], v[{a}:{a+3}]")
        tm(g,'p',3+2*R)
    if 'k2' in VAR: g("s_endpgm")
    g("s_nop 7\ns_nop 3\nv_and_b32 v22, 15, v2\nv_lshrrev_b32 v23, 4, v2\nv_lshlrev_b32 v25, 8, v23\nv_lshl_add_u32 v25, v22, 2, v25\nv_add_u32 v25, v8, v25")
    for R in range(2):
        for r in range(4): g(f"ds_write_b32 v25, v{144+4*R+r} offset:{R*1024+r*64}")
    g("s_waitcnt lgkmcnt(0)\ns_barrier")
    tm(g,'p',6); tm(g,'p',7); tm(g,'p',8)
    g("v_and_b32 v26, 2, v1\ns_mov_b32 s26, 8704\nv_mul_lo_u32 v26, v26, s26\ns_mov_b32 s27, 0x7fff\ns_mov_b32 s28, 128")
    g("s_lshl_b32 s30, s29, 1\ns_add_u32 s31, s30, 1\ns_cmp_eq_u32 s29, 0\ns_cselect_b32 s22, 63, 127\ns_lshl_b32 s23, s29, 6\nv_and_b32 v30, s22, v5\nv_add_u32 v30, s23, v30")
    for ps in range(2):
        if ps==1: g("s_cmp_eq_u32 s29, 0\ns_cbranch_scc1 L_prep_end\nv_and_b32 v30, 63, v5\nv_add_u32 v30, 192, v30")
        g("v_lshlrev_b32 v27, 3, v30\nv_or_b32 v27, 128, v27\nv_ffbh_u32 v27, v27\nv_sub_u32 v28, 24, v27")
        g("v_subrev_u32 v29, s30, v28\nv_lshl_add_u32 v29, v29, 10, v26\nv_min_u32 v27, 1, v28\nv_lshlrev_b32 v27, 9, v27\nv_sub_u32 v29, v29, v27")
        g("v_lshlrev_b32 v31, v28, 1\nv_add_u32 v31, -1, v31\nv_add_u32 v28, 1, v28\nv_lshlrev_b32 v32, 4, v30")
        for e in range(8):
            g(f"v_add_u32 v27, {2*e}, v32\nv_bfe_u32 v33, v27, v28, 1\nv_add3_u32 v27, v27, v31, v33\nv_lshrrev_b32 v27, v28, v27\nv_lshl_add_u32 v27, v27, 2, v29")
            g(f"ds_read_b32 v{40+e}, v27\nds_read_b32 v{56+e}, v27 offset:8704")
        g("s_waitcnt lgkmcnt(0)")
        for e in range(8): g(f"v_add_f32 v{40+e}, v{40+e}, v{56+e}")
        for j in range(4):
            e0=7-2*j; e1=e0-1
            g(f"v_cvt_pk_bf16_f32 v{72+j}, v{40+e0}, v{40+e1}")
        g(f"v_lshlrev_b32 v27, 13, v3\nv_lshl_add_u32 v27, v30, 4, v27\ns_mov_b32 s23, {KBUF}")
        g("buffer_store_dwordx4 v[72:75], v27, s[8:11], s23 offen\ns_nop 1")
    g.lab("L_prep_end")
    if 'tmp' in VAR: g("s_cmp_lt_u32 s2, 640\ns_cbranch_scc0 L_pe2")
    tmout(g,'p')
    g.lab("L_pe2")
    g("s_endpgm")
    g.o.append(kdesc("prep_kernel",160))
```

```python
from gen1 import *
def bfr(g,d,s):
    g(f"v_cvt_pk_bf16_f32 v{d}, v{s}, v{s}\nv_lshlrev_b32 v{d}, 16, v{d}")
def conv(g,name,xin,xout,stats,P):
    KOFF=33280
    khead(g,name)
    g("s_cmp_ge_u32 s2, 512\ns_cbranch_scc1 L_end_"+name)
    srd(g,8,14,WSZ); srd(g,12,8,1024)
    tm(g,'c',0)
    g("v_lshrrev_b32 v1, 6, v0\nv_and_b32 v2, 63, v0")
    g(f"s_lshl_b32 s3, s2, 13\ns_add_u32 s3, s3, {KBUF}\ns_lshl_b32 s4, s2, 12\ns_add_u32 s5, s4, {xout}\ns_add_u32 s4, s4, {xin}\ns_lshl_b32 s6, s2, 1\ns_mov_b32 s7, {stats}\ns_waitcnt lgkmcnt(0)")
    g("v_lshlrev_b32 v3, 4, v0\nbuffer_load_dwordx4 v[16:19], v3, s[8:11], s3 offen\nbuffer_load_dwordx4 v[32:35], v3, s[8:11], s4 offen")
    g("v_mov_b32 v5, s6\nbuffer_load_ushort v6, v5, s[12:15], 0 offen")
    PB=[40,72,56,88]
    for i in range(4*P):
        g(f"s_add_u32 s{20+i}, s7, {4096*i}\nbuffer_load_dwordx4 v[{PB[i>>2]+4*(i&3)}:{PB[i>>2]+3+4*(i&3)}], v3, s[8:11], s{20+i} offen")
    g(f"v_mov_b32 v8, 0\nv_mov_b32 v9, 0\nv_mov_b32 v10, 0\nv_mov_b32 v11, 0\nv_mov_b32 v12, {KOFF}")
    g("v_min_u32 v13, 0x9f, v0\nv_lshl_add_u32 v13, v13, 4, v12\nds_write_b128 v13, v[8:11]")
    g("v_lshrrev_b32 v14, 2, v2\nv_and_b32 v14, 7, v14\ns_mov_b32 s16, 4160\nv_mul_lo_u32 v14, v14, s16\nv_and_b32 v15, 3, v2\nv_lshl_add_u32 v14, v15, 4, v14\nds_write_b128 v14, v[8:11]")
    g("v_lshrrev_b32 v14, 2, v0\ns_mov_b32 s16, 80\nv_mul_lo_u32 v14, v14, s16\nv_lshl_add_u32 v14, v15, 4, v14\nv_add_u32 v14, v12, v14\n"+f"s_waitcnt vmcnt({2+4*P})")
    g("ds_write_b128 v14, v[16:19] offset:2560")
    stage(g,1)
    tm(g,'c',1)
    g("s_waitcnt vmcnt(0)")
    tm(g,'c',2)
    g("v_lshlrev_b32 v6, 16, v6\ns_mov_b32 s16, 0x3b000000\ns_mov_b32 s17, 0x3727c5ac")
    for e in range(8):
        s=40+2*e; q=s+1
        if P==4: g(f"v_pk_add_f32 v[{s+32}:{q+32}], v[{s+32}:{q+32}], v[{s+48}:{q+48}]\nv_pk_add_f32 v[{s}:{q}], v[{s}:{q}], v[{s+16}:{q+16}]")
        if P>1: g(f"v_pk_add_f32 v[{s}:{q}], v[{s}:{q}], v[{s+32}:{q+32}]")
        g(f"v_mul_f32 v{s}, s16, v{s}\nv_mul_f32 v{q}, s16, v{q}\nv_fma_f32 v{q}, -v{s}, v{s}, v{q}\nv_max_f32 v{q}, 0, v{q}")
        bfr(g,s,s); bfr(g,q,q)
        g(f"v_add_f32 v{q}, s17, v{q}"); bfr(g,q,q)
        g(f"v_sqrt_f32 v{q}, v{q}\ns_nop 0"); bfr(g,q,q)
        g(f"v_rcp_f32 v{q}, v{q}")
        if e&1: g(f"v_and_b32 v{104+e}, 0xffff0000, v{32+(e>>1)}")
        else: g(f"v_lshlrev_b32 v{104+e}, 16, v{32+(e>>1)}")
        g(f"v_sub_f32 v{s}, v{104+e}, v{s}"); bfr(g,s,s)
        g(f"v_mul_f32 v{s}, v{s}, v{q}"); bfr(g,s,s)
        g(f"v_mul_f32 v{120+e}, v{s}, v6"); bfr(g,120+e,120+e)
        if e&1: g(f"v_cvt_pk_bf16_f32 v{20+(e>>1)}, v{s-2}, v{s}")
    tm(g,'c',3)
    g("ds_write_b128 v3, v[20:23] offset:48656\nv_mov_b32 v15, 0\nds_write_b128 v15, v[8:11] offset:48640\ns_waitcnt lgkmcnt(0)\ns_barrier\nds_read_b128 v[16:19], v3 offset:48640\ns_waitcnt lgkmcnt(0)")
    for k in range(7): g(f"v_alignbit_b32 v{40+k}, v{17+k}, v{16+k}, 16")
    tr=48
    for c in range(8):
        rel=c+1
        b=(16+rel//2) if rel%2==0 else (40+rel//2)
        if b&1:
            for j in range(4): g(f"v_mov_b32 v{tr+j}, v{b+j}")
            b=tr; tr+=4
        g(f"ds_write_b128 v3, v[{b}:{b+3}] offset:{c*4160+64}")
    tm(g,'c',4)
    g("v_and_b32 v3, 31, v2\nv_lshrrev_b32 v4, 5, v2\nv_and_b32 v5, 7, v3\nv_lshrrev_b32 v7, 3, v3\ns_mov_b32 s16, 4160\nv_mul_lo_u32 v5, v5, s16\nv_sub_u32 v7, v7, v4\nv_add_u32 v7, 2, v7\nv_lshl_add_u32 v5, v7, 4, v5")
    g("v_and_b32 v14, 1, v1\nv_lshrrev_b32 v15, 1, v1\ns_mov_b32 s16, 80\nv_mul_lo_u32 v7, v3, s16\nv_lshl_add_u32 v7, v4, 4, v7\nv_add_u32 v7, v12, v7\nv_lshl_add_u32 v7, v14, 5, v7\nv_lshlrev_b32 v13, 5, v14\nv_sub_u32 v5, v5, v13")
    g("v_lshl_add_u32 v5, v15, 10, v5\ns_movk_i32 s16, 1280\nv_mul_lo_u32 v15, v15, s16\nv_sub_u32 v7, v7, v15")
    g("s_waitcnt lgkmcnt(0)\ns_barrier")
    stage(g,2)
    tm(g,'c',5)
    steps=[(m,0) for m in range(64)]
    if 'noloop' in VAR: steps=steps[:4]
    D=2; NB=3
    N=16 if 'noloop' not in VAR else 3
    def issue(m):
        b=168+16*(m%NB)
        g(f"ds_read_b128 v[{b}:{b+3}], v5 offset:{(4*m+2)*16}")
        g(f"ds_read_b128 v[{b+8}:{b+11}], v7 offset:{(64-m)*80}")
        g(f"ds_read_b128 v[{b+4}:{b+7}], v7 offset:{(32-m)*80}")
        g(f"ds_read_b128 v[{b+12}:{b+15}], v5 offset:{(4*(m+32)+2)*16}")
    for i in range(D): issue(i)
    for i in range(N):
        if i+D<N: issue(i+D)
        out=4*(min(i+D+1,N)-i-1)
        g(f"s_waitcnt lgkmcnt({out})")
        b=168+16*(i%NB)
        g(f"v_mfma_f32_32x32x16_bf16 v[152:167], v[{b}:{b+3}], v[{b+8}:{b+11}], {'v[152:167]' if i else '0'}")
        g(f"v_mfma_f32_32x32x16_bf16 v[136:151], v[{b}:{b+3}], v[{b+4}:{b+7}], {'v[136:151]' if i else '0'}")
        g(f"v_mfma_f32_32x32x16_bf16 v[152:167], v[{b+12}:{b+15}], v[{b+4}:{b+7}], v[152:167]")
    stage(g,3)
    tm(g,'c',6)
    g("s_nop 7\ns_nop 7\ns_barrier")
    g("v_and_b32 v5, 7, v3\nv_xor_b32 v5, v5, v4\nv_lshlrev_b32 v5, 4, v5\nv_lshl_add_u32 v5, v3, 7, v5\nv_lshl_add_u32 v5, v1, 13, v5")
    for q in range(4): g(f"v_xor_b32 v{8+q}, {q*32}, v5")
    for cg in range(2):
        for q in range(4): g(f"ds_write_b128 v{8+q}, v[{136+16*cg+4*q}:{139+16*cg+4*q}] offset:{cg*4096}")
    g("v_lshrrev_b32 v7, 2, v0\nv_and_b32 v5, 3, v0\nv_lshlrev_b32 v5, 1, v5\nv_and_b32 v13, 7, v7\nv_xor_b32 v5, v5, v13\nv_lshlrev_b32 v5, 4, v5\nv_lshl_add_u32 v5, v7, 7, v5\nv_xor_b32 v7, 16, v5")
    g("s_waitcnt lgkmcnt(0)\ns_barrier")
    for p in range(4):
        for i in range(2): g(f"ds_read_b128 v[{40+8*p+4*i}:{43+8*p+4*i}], v{5+2*i} offset:{8192*p}")
    g("s_waitcnt lgkmcnt(0)")
    tm(g,'c',7)
    for e in range(8):
        g(f"v_add_f32 v{40+e}, v{40+e}, v{48+e}\nv_add_f32 v{56+e}, v{56+e}, v{64+e}\nv_add_f32 v{40+e}, v{40+e}, v{56+e}"); bfr(g,40+e,40+e)
        g(f"v_add_f32 v{40+e}, v{40+e}, v{120+e}"); bfr(g,40+e,40+e)
        g(f"v_add_f32 v{40+e}, v{40+e}, v{104+e}")
        if e&1: g(f"v_cvt_pk_bf16_f32 v{20+(e>>1)}, v{40+e-1}, v{40+e}")
    g("v_lshlrev_b32 v4, 4, v0\nbuffer_store_dwordx4 v[20:23], v4, s[8:11], s5 offen")
    tm(g,'c',8); tmout(g,'c')
    g.lab("L_end_"+name); g("s_endpgm")
    g.o.append(kdesc(name,216))
```

```python
from gen2 import *
def qkv(g,name,xin):
    khead(g,name)
    g("s_cmp_ge_u32 s2, 256\ns_cbranch_scc1 L_end_"+name)
    srd(g,8,14,WSZ)
    tm(g,'q',0)
    g("s_mov_b32 s20, 0x05040100\ns_mov_b32 s21, 0x07060302")
    g("v_lshrrev_b32 v1, 6, v0\nv_and_b32 v2, 63, v0\nv_and_b32 v3, 15, v2\nv_lshrrev_b32 v4, 4, v2\ns_nop 0\nv_readfirstlane_b32 s4, v1")
    if 'mA' in VAR:
        g("s_bfe_u32 s5, s2, 0x10002\ns_lshl_b32 s5, s5, 4\ns_lshr_b32 s6, s2, 4\ns_add_u32 s5, s5, s6\ns_and_b32 s6, s2, 3\ns_lshl_b32 s6, s6, 1\ns_bfe_u32 s7, s2, 0x10003\ns_add_u32 s6, s6, s7\ns_lshl_b32 s6, s6, 2\ns_add_u32 s6, s6, s4")
    elif 'mB' in VAR:
        g("s_and_b32 s5, s2, 7\ns_lshl_b32 s5, s5, 2\ns_lshr_b32 s6, s2, 6\ns_add_u32 s5, s5, s6\ns_bfe_u32 s6, s2, 0x30003\ns_lshl_b32 s6, s6, 2\ns_add_u32 s6, s6, s4")
    else:
        g("s_bfe_u32 s5, s2, 0x20001\ns_lshl_b32 s5, s5, 3\ns_lshr_b32 s6, s2, 5\ns_add_u32 s5, s5, s6\ns_and_b32 s6, s2, 1\ns_lshl_b32 s6, s6, 2\ns_bfe_u32 s7, s2, 0x20003\ns_add_u32 s6, s6, s7\ns_lshl_b32 s6, s6, 2\ns_add_u32 s6, s6, s4")
    g(f"s_lshl_b32 s7, s6, 14\ns_add_u32 s7, s7, {WQT}\ns_lshl_b32 s16, s5, 7\ns_add_u32 s16, s16, {xin}\ns_waitcnt lgkmcnt(0)")
    g("v_and_b32 v5, 7, v0\nv_lshrrev_b32 v6, 3, v0\nv_lshlrev_b32 v7, 15, v6\nv_lshl_add_u32 v7, v5, 4, v7")
    g("v_add_u32 v8, 0x100000, v7")
    for i in range(8):
        g(f"buffer_load_dwordx4 v[{16+4*i}:{19+4*i}], v7, s[8:11], s16 offen\nbuffer_load_dwordx4 v[{48+4*i}:{51+4*i}], v8, s[8:11], s16 offen\nv_add_u32 v7, 4096, v7\nv_add_u32 v8, 4096, v8")
    g("v_lshlrev_b32 v9, 4, v2\ns_add_u32 s26, s7, 0x80000\ns_add_u32 s27, s7, 0x100000")
    def wl(k,c):
        a=(c*16+k)*4
        g(f"buffer_load_dwordx4 a[{a}:{a+3}], v9, s[8:11], s{[7,26,27][c]} offen offset:{(k&3)*1024}")
        if k&3==3 and c==2: g("v_add_u32 v9, 4096, v9")
    PRE=3; DD=7
    for k in range(PRE):
        for c in range(3): wl(k,c)
    g("v_lshrrev_b32 v10, 3, v3\nv_xor_b32 v10, v10, v3\nv_xor_b32 v10, v10, v4\nv_lshlrev_b32 v8, 1, v1\nv_xor_b32 v8, v8, v10\nv_lshlrev_b32 v7, 10, v3\nv_lshl_add_u32 v7, v1, 14, v7")
    for k4 in range(4):
        for p in range(2): g(f"v_xor_b32 v11, {2*p+4*k4}, v10\nv_lshlrev_b32 v11, 4, v11\nv_lshl_add_u32 v{[12,188][p]+k4}, v3, 10, v11")
        g(f"v_xor_b32 v11, {4*k4}, v8\nv_lshl_add_u32 v{184+k4}, v11, 4, v7")
    g("v_and_b32 v10, 1, v5\nv_lshlrev_b32 v10, 3, v10\nv_xor_b32 v10, v10, v5\nv_xor_b32 v10, v10, v6\nv_lshlrev_b32 v10, 4, v10\nv_lshl_add_u32 v7, v5, 13, v10")
    for r in range(112,180): g(f"v_mov_b32 v{r}, 0")
    for r in range(180,184): g(f"v_mov_b32 v{r}, 0x3f803f80")
    stage(g,1)
    tm(g,'q',1)
    g(f"s_waitcnt vmcnt({3*PRE})")
    tm(g,'q',2)
    q=[(k,c) for k in range(PRE,DD) for c in range(3)]
    for blk in range(2):
        transp8(g,16+32*blk,80,20,21)
        for tt in range(8):
            g(f"v_xor_b32 v{10+(tt&1)}, {tt*16}, v7\nds_write_b128 v{10+(tt&1)}, v[{80+4*tt}:{83+4*tt}] offset:{tt*1024+blk*512}")
            if tt<6: wl(*q.pop(0))
    assert not q
    g("s_waitcnt lgkmcnt(0)\ns_barrier")
    def rd(k):
        if 'qa' in VAR: return
        b=16+20*(k&1)
        for ts in range(4): g(f"ds_read_b128 v[{b+4*ts}:{b+4*ts+3}], v{[12,188][ts&1]+((k&3)^(ts>>1))} offset:{ts*16384+(k>>2)*256}")
        g(f"ds_read_b128 v[{b+16}:{b+19}], v{184+(k&3)} offset:{(k>>2)*256}")
    stage(g,2)
    tm(g,'q',3)
    rd(0)
    for k in range(16):
        if 'noloop' in VAR and k<15: continue
        if k<15: rd(k+1)
        if k+DD<16:
            for c in range(3): wl(k+DD,c)
        g(f"s_waitcnt vmcnt({3*(min(k+DD,15)-k)}) lgkmcnt({5 if k<15 else 0})")
        b=16+20*(k&1)
        if k==4: tm(g,'q',4)
        if k==10: tm(g,'q',5)
        if k==15: tm(g,'q',6)
        if 'qb' in VAR: continue
        for c in range(3):
            a=(c*16+k)*4
            for ts in range(4):
                d=112+16*c+4*ts
                if c<2: g(f"v_mfma_f32_16x16x32_bf16 v[{d}:{d+3}], a[{a}:{a+3}], v[{b+4*ts}:{b+4*ts+3}], v[{d}:{d+3}]")
                else: g(f"v_mfma_f32_16x16x32_bf16 v[{d}:{d+3}], v[{b+4*ts}:{b+4*ts+3}], a[{a}:{a+3}], v[{d}:{d+3}]")
            if c<2: g(f"v_mfma_f32_16x16x32_bf16 v[{160+4*c}:{163+4*c}], a[{a}:{a+3}], v[180:183], v[{160+4*c}:{163+4*c}]")
            else: g(f"v_mfma_f32_16x16x32_bf16 v[{160+4*c}:{163+4*c}], v[180:183], a[{a}:{a+3}], v[{160+4*c}:{163+4*c}]")
        g(f"v_mfma_f32_16x16x32_bf16 v[172:175], v[{b+16}:{b+19}], v[{b+16}:{b+19}], v[172:175]")
        g(f"v_mfma_f32_16x16x32_bf16 v[176:179], v[{b+16}:{b+19}], v[180:183], v[176:179]")
    stage(g,3)
    g("s_nop 7\ns_nop 1")
    tm(g,'q',7)
    g("v_and_b32 v10, 3, v3\nv_mov_b32 v16, v172\nv_mov_b32 v17, v176")
    for r in range(1,4):
        g(f"v_cmp_eq_u32 vcc, {r}, v10\ns_nop 1\nv_cndmask_b32 v16, v16, v{172+r}, vcc\nv_cndmask_b32 v17, v17, v{176+r}, vcc")
    g("s_mov_b32 s18, 0x3b000000\ns_mov_b32 s19, 0x3727c5ac\nv_mul_f32 v17, s18, v17\nv_mul_f32 v16, s18, v16\nv_fma_f32 v16, -v17, v17, v16\nv_max_f32 v16, 0, v16")
    bfr(g,17,17); bfr(g,16,16); g("v_add_f32 v16, s19, v16"); bfr(g,16,16); g("v_sqrt_f32 v16, v16\ns_nop 0"); bfr(g,16,16); g("v_rcp_f32 v16, v16")
    g("s_barrier\nv_lshrrev_b32 v10, 2, v3\nv_cmp_eq_u32 vcc, v10, v4\nv_lshl_add_u32 v11, v1, 4, v3\nv_lshlrev_b32 v11, 3, v11\ns_and_saveexec_b64 s[30:31], vcc\nds_write_b64 v11, v[16:17]\ns_mov_b64 exec, s[30:31]\ns_waitcnt lgkmcnt(0)\ns_barrier\nv_lshlrev_b32 v11, 3, v3")
    for ts in range(4): g(f"ds_read_b64 v[{20+2*ts}:{21+2*ts}], v11 offset:{ts*128}")
    g("v_lshlrev_b32 v12, 5, v4")
    for ts in range(4): g(f"ds_read_b128 v[{32+8*ts}:{35+8*ts}], v12 offset:{ts*128}\nds_read_b128 v[{36+8*ts}:{39+8*ts}], v12 offset:{ts*128+16}")
    g("s_waitcnt lgkmcnt(8)")
    g(f"s_lshl_b32 s16, s5, 6\nv_add_u32 v10, s16, v3\ns_lshl_b32 s23, s6, 16\ns_add_u32 s23, s23, {QB}\ns_add_u32 s24, s23, {KB-QB}\ns_lshl_b32 s25, s5, 11\ns_add_u32 s25, s25, s23\ns_add_u32 s25, s25, {VT-QB}")
    g("v_lshlrev_b32 v11, 5, v10\nv_lshl_add_u32 v11, v4, 3, v11")
    for c in range(2):
        for ts in range(4):
            for r in range(4):
                d=112+16*c+4*ts+r
                g(f"v_fma_f32 v{d}, -v{21+2*ts}, v{160+4*c+r}, v{d}\nv_mul_f32 v{d}, v{d}, v{20+2*ts}")
            d=112+16*c+4*ts
            g(f"v_cvt_pk_bf16_f32 v{d}, v{d}, v{d+1}\nv_cvt_pk_bf16_f32 v{d+1}, v{d+2}, v{d+3}\nbuffer_store_dwordx2 v[{d}:{d+1}], v11, s[8:11], s{23+c} offen offset:{ts*512}")
    g("v_lshrrev_b32 v11, 1, v4\nv_lshlrev_b32 v11, 8, v11\nv_lshl_add_u32 v11, v3, 4, v11\nv_and_b32 v12, 1, v4\nv_lshl_add_u32 v11, v12, 3, v11\ns_waitcnt lgkmcnt(0)")
    for ts in range(4):
        for r in range(4):
            d=144+4*ts+r
            g(f"v_fma_f32 v{d}, -v{33+8*ts+2*r}, v168, v{d}\nv_mul_f32 v{d}, v{d}, v{32+8*ts+2*r}")
        d=144+4*ts
        g(f"v_cvt_pk_bf16_f32 v{d}, v{d}, v{d+1}\nv_cvt_pk_bf16_f32 v{d+1}, v{d+2}, v{d+3}\nbuffer_store_dwordx2 v[{d}:{d+1}], v11, s[8:11], s25 offen offset:{ts*512}")
    tm(g,'q',8)
    tmout(g,'q')
    g.lab("L_end_"+name); g("s_endpgm")
    g.o.append(kdesc(name,192,192))

def attn(g):
    name="attn_kernel"
    khead(g,name)
    g("s_cmp_ge_u32 s2, 512\ns_cbranch_scc1 L_end_"+name)
    srd(g,8,14,WSZ)
    tm(g,'a',0)
    g("v_lshrrev_b32 v1, 6, v0\nv_and_b32 v2, 31, v0\nv_bfe_u32 v3, v0, 5, 1\ns_nop 0\nv_readfirstlane_b32 s4, v1")
    g("s_lshr_b32 s5, s2, 5\ns_lshl_b32 s5, s5, 2\ns_add_u32 s5, s5, s4\ns_lshl_b32 s5, s5, 5\ns_and_b32 s6, s2, 7\ns_lshl_b32 s6, s6, 2\ns_bfe_u32 s7, s2, 0x20003\ns_add_u32 s6, s6, s7\ns_lshl_b32 s7, s6, 16")
    g(f"s_add_u32 s16, s7, {QB}\ns_add_u32 s17, s7, {KB}\ns_add_u32 s18, s7, {VT}\ns_waitcnt lgkmcnt(0)")
    g("v_add_u32 v4, s5, v2\nv_lshlrev_b32 v4, 5, v4\nv_lshl_add_u32 v4, v3, 4, v4\nbuffer_load_dwordx4 v[8:11], v4, s[8:11], s16 offen")
    g("v_and_b32 v5, 0x13, v2\nv_bfe_u32 v6, v2, 2, 1\nv_lshl_add_u32 v5, v6, 3, v5\nv_bfe_u32 v6, v2, 3, 1\nv_lshl_add_u32 v5, v6, 2, v5")
    g("s_sub_u32 s19, s5, 256\nv_add_u32 v5, s19, v5\nv_lshlrev_b32 v5, 5, v5\nv_lshl_add_u32 v5, v3, 4, v5\nv_add_u32 v5, s17, v5")
    g("s_mov_b32 s24, 0\ns_mov_b32 s25, 4096\ns_mov_b32 s26, 8192")
    for jb in range(9): g(f"buffer_load_dwordx4 v[{12+4*jb}:{15+4*jb}], v5, s[8:11], s{24+(jb>>2)} offen offset:{(jb&3)*1024}")
    g("v_and_b32 v6, 27, v2\nv_cmp_eq_u32 vcc, 16, v6\nv_mov_b32 v6, 0x3f803f80\ns_nop 0\nv_cndmask_b32 v6, 0, v6, vcc")
    for r in range(36): g(f"v_accvgpr_write_b32 a{r}, v6")
    g("v_mov_b32 v1, v6")
    g("v_lshlrev_b32 v6, 4, v2\nv_lshl_add_u32 v6, v3, 8, v6\ns_lshl_b32 s19, s19, 5\nv_add_u32 v6, s19, v6\nv_add_u32 v6, s18, v6\nv_cmp_gt_u32 vcc, 16, v2\ns_and_saveexec_b64 s[30:31], vcc")
    for i in range(9): g(f"buffer_load_dwordx4 a[{4*i}:{4*i+3}], v6, s[8:11], s{24+(i>>3)} offen offset:{(i&7)*512}")
    g("s_mov_b64 s[34:35], exec\ns_mov_b64 exec, s[30:31]\nv_mov_b32 v0, v6")
    stage(g,1)
    tm(g,'a',1)
    g("s_waitcnt vmcnt(9)")
    tm(g,'a',2)
    for jb in range(9):
        g(f"v_mfma_f32_32x32x16_bf16 v[{48+16*jb}:{63+16*jb}], v[{12+4*jb}:{15+4*jb}], v[8:11], 0")
    g("s_nop 7\ns_nop 7")
    for r in range(12,48): g(f"v_mov_b32 v{r}, v1")
    g("s_mov_b64 exec, s[34:35]")
    for i in range(9,18): g(f"buffer_load_dwordx4 v[{12+4*(i-9)}:{15+4*(i-9)}], v0, s[8:11], s{24+(i>>3)} offen offset:{(i&7)*512}")
    g("s_mov_b64 exec, s[30:31]")
    g("v_mov_b32 v7, 0xf149f2ca\nv_lshlrev_b32 v6, 3, v3\nv_sub_u32 v6, v2, v6")
    for r in range(16):
        c=16*(r>>3)+(r&7)
        g(f"v_cmp_lt_i32 vcc, v6, {c}\nv_cmp_ge_i32 s[32:33], v6, {c}\ns_nop 0\nv_cndmask_b32 v{48+r}, v7, v{48+r}, vcc\nv_cndmask_b32 v{176+r}, v7, v{176+r}, s[32:33]")
    for jb in range(8):
        g(f"s_cmp_ge_u32 s5, {256-32*jb}\ns_cbranch_scc1 L_mk_done")
        for r in range(16): g(f"v_mov_b32 v{48+16*jb+r}, v7")
    g.lab("L_mk_done")
    tm(g,'a',3)
    g("v_max_f32 v4, v48, v49")
    for r in range(50,192,2): g(f"v_max3_f32 v4, v4, v{r}, v{r+1}")
    g("v_xor_b32 v5, 1, v3\nv_lshl_add_u32 v5, v5, 5, v2\nv_lshlrev_b32 v5, 2, v5\nds_bpermute_b32 v6, v5, v4\ns_mov_b32 s20, 0x3eb8aa3b\ns_waitcnt lgkmcnt(0)\nv_max_f32 v4, v4, v6\nv_mul_f32 v4, s20, v4")
    stage(g,2)
    tm(g,'a',4)
    g("s_waitcnt vmcnt(9)")
    tm(g,'a',5)
    for i in range(18):
        if i==9: g("s_waitcnt vmcnt(0)")
        if 'noloop' in VAR and i>0: continue
        b=48+8*i; p=b
        for r in range(8): g(f"v_fma_f32 v{b+r}, v{b+r}, s20, -v4")
        for r in range(8): g(f"v_exp_f32 v{b+r}, v{b+r}")
        g("s_nop 0")
        for j in range(4): g(f"v_cvt_pk_bf16_f32 v{p+j}, v{b+2*j}, v{b+2*j+1}")
        g(f"s_nop 1\nv_mfma_f32_32x32x16_bf16 v[192:207], {'a' if i<9 else 'v'}[{4*i if i<9 else 12+4*(i-9)}:{4*i+3 if i<9 else 15+4*(i-9)}], v[{p}:{p+3}], {'v[192:207]' if i else '0'}")
    stage(g,3)
    tm(g,'a',6)
    g("s_nop 7\ns_nop 7\nv_rcp_f32 v4, v200\ns_nop 0")
    for r in range(8): g(f"v_mul_f32 v{192+r}, v{192+r}, v4")
    for j in range(4): g(f"v_cvt_pk_bf16_f32 v{8+j}, v{192+2*j}, v{193+2*j}")
    g(f"v_lshrrev_b32 v5, 4, v2\nv_lshlrev_b32 v5, 14, v5\nv_and_b32 v6, 15, v2\nv_lshl_add_u32 v5, v6, 4, v5\nv_lshl_add_u32 v5, v3, 3, v5\ns_lshl_b32 s19, s6, 9\ns_lshl_b32 s21, s5, 10\ns_add_u32 s19, s19, s21\ns_add_u32 s19, s19, {OB}")
    g("buffer_store_dwordx2 v[8:9], v5, s[8:11], s19 offen\nbuffer_store_dwordx2 v[10:11], v5, s[8:11], s19 offen offset:256")
    tm(g,'a',7); tm(g,'a',8); tmout(g,'a')
    g.lab("L_end_"+name); g("s_endpgm")
    g.o.append(kdesc(name,208,36))
```

```python
from gen3 import *
def oproj(g,name,xres,xout,stats,final):
    khead(g,name)
    g("s_cmp_ge_u32 s2, 256\ns_cbranch_scc1 L_end_"+name)
    srd(g,8,14,WSZ)
    if final: srd(g,12,12,2048*512*2)
    tm(g,'o',0)
    g("v_lshrrev_b32 v1, 6, v0\nv_and_b32 v2, 63, v0\nv_and_b32 v3, 15, v2\nv_lshrrev_b32 v4, 4, v2\ns_nop 0\nv_readfirstlane_b32 s4, v1")
    g("s_lshr_b32 s5, s2, 1\ns_lshl_b32 s5, s5, 4\ns_and_b32 s6, s2, 1\ns_lshl_b32 s7, s6, 8\ns_lshl_b32 s16, s4, 6\ns_add_u32 s7, s7, s16")
    g(f"s_lshl_b32 s16, s7, 10\ns_add_u32 s16, s16, {WOT}\ns_lshl_b32 s17, s5, 10\ns_add_u32 s17, s17, {OB}\ns_waitcnt lgkmcnt(0)")
    g("v_lshlrev_b32 v5, 4, v2")
    for k in range(16):
        g(f"buffer_load_dwordx4 v[{16+4*k}:{19+4*k}], v5, s[8:11], s17 offen offset:{(k&3)*1024}")
        if k&3==3: g("v_add_u32 v5, 4096, v5")
    g("v_mov_b32 v6, v5")
    if True:
        g("v_lshlrev_b32 v6, 4, v2")
        for i in range(64):
            g(f"buffer_load_dwordx4 a[{4*i}:{4*i+3}], v6, s[8:11], s16 offen offset:{(i&3)*1024}")
            if i&3==3: g("v_add_u32 v6, 4096, v6")
    for rt in range(0):
        for k in range(16):
            a=(rt*16+k)*4
            g(f"buffer_load_dwordx4 a[{a}:{a+3}], v6, s[8:11], s16 offen offset:{k*64}")
        g("v_add_u32 v6, 16384, v6")
    g(f"v_lshlrev_b32 v7, 14, v4\nv_lshl_add_u32 v7, v3, 1, v7\ns_lshl_b32 s18, s7, 12\ns_lshl_b32 s19, s5, 1\ns_add_u32 s18, s18, s19\ns_add_u32 s19, s18, {xout}\ns_add_u32 s18, s18, {xres}\nv_mov_b32 v8, v7")
    for rt in range(4):
        for r in range(4):
            g(f"buffer_load_ushort v{96+4*rt+r}, v8, s[8:11], s18 offen\nv_add_u32 v8, {4096 if r<3 else 65536-3*4096}, v8")
    stage(g,1)
    tm(g,'o',1)
    for r in range(80,96): g(f"v_mov_b32 v{r}, 0")
    for rt in range(4):
        g(f"s_waitcnt vmcnt({min(63,16+48-16*rt)})")
        tm(g,'o',2+rt)
        for k in range(16):
            if 'noloop' in VAR and k>0: continue
            a=(rt*16+k)*4
            g(f"v_mfma_f32_16x16x32_bf16 v[{80+4*rt}:{83+4*rt}], a[{a}:{a+3}], v[{16+4*k}:{19+4*k}], v[{80+4*rt}:{83+4*rt}]")
    stage(g,3)
    g("s_nop 7\ns_waitcnt vmcnt(0)")
    tm(g,'o',6)
    for i in range(16):
        bfr(g,80+i,80+i)
        g(f"v_lshlrev_b32 v{96+i}, 16, v{96+i}\nv_add_f32 v{80+i}, v{80+i}, v{96+i}")
    if final:
        g("v_add_u32 v8, s5, v3\nv_lshlrev_b32 v8, 10, v8\nv_lshl_add_u32 v8, v4, 3, v8\ns_lshl_b32 s16, s7, 1")
        for rt in range(4):
            g(f"v_cvt_pk_bf16_f32 v10, v{80+4*rt}, v{81+4*rt}\nv_cvt_pk_bf16_f32 v11, v{82+4*rt}, v{83+4*rt}\nbuffer_store_dwordx2 v[10:11], v8, s[12:15], s16 offen offset:{rt*32}\ns_nop 0")
    else:
        g("v_mov_b32 v10, 0\nv_mov_b32 v11, 0")
        for rt in range(4):
            for r in range(4):
                i=80+4*rt+r
                g(f"v_cvt_pk_bf16_f32 v12, v{i}, v{i}\nbuffer_store_short v12, v7, s[8:11], s19 offen\nv_add_u32 v7, {4096 if r<3 else 65536-3*4096}, v7\nv_lshlrev_b32 v13, 16, v12\nv_add_f32 v10, v10, v13\nv_fmac_f32 v11, v13, v13")
        tm(g,'o',7); tm(g,'o',8); tmout(g,'o')
        g("v_lshlrev_b32 v12, 3, v0\nds_write_b64 v12, v[10:11]\ns_waitcnt lgkmcnt(0)\ns_barrier\ns_cmp_lg_u32 s4, 0\ns_cbranch_scc1 L_end_"+name)
        g("v_lshlrev_b32 v12, 3, v3")
        for i in range(16): g(f"ds_read_b64 v[{16+2*i}:{17+2*i}], v12 offset:{i*128}")
        g("s_waitcnt lgkmcnt(0)")
        for i in range(1,16): g(f"v_add_f32 v16, v16, v{16+2*i}\nv_add_f32 v17, v17, v{17+2*i}")
        g("v_bfe_u32 v12, v3, 1, 2\nv_lshlrev_b32 v12, 12, v12\nv_lshrrev_b32 v13, 3, v3\nv_lshl_add_u32 v12, v13, 4, v12\nv_and_b32 v13, 1, v3\nv_lshl_add_u32 v12, v13, 3, v12")
        g(f"s_lshl_b32 s16, s6, 14\ns_lshl_b32 s17, s5, 1\ns_add_u32 s16, s16, s17\ns_add_u32 s16, s16, {stats}\nv_cmp_gt_u32 vcc, 16, v2\ns_and_saveexec_b64 s[30:31], vcc\nbuffer_store_dwordx2 v[16:17], v12, s[8:11], s16 offen")
    g.lab("L_end_"+name); g("s_endpgm")
    g.o.append(kdesc(name,112,256))

def oprojf(g,name,xres,final=True,xout=0,stats=0):
    khead(g,name)
    g("s_cmp_ge_u32 s2, 256\ns_cbranch_scc1 L_end_"+name)
    srd(g,8,14,WSZ)
    if final: srd(g,12,12,2048*512*2)
    g("v_lshrrev_b32 v1, 6, v0\nv_and_b32 v2, 63, v0\nv_and_b32 v3, 15, v2\nv_lshrrev_b32 v4, 4, v2\ns_nop 0\nv_readfirstlane_b32 s4, v1")
    if not final:
        g("s_and_b32 s5, s2, 7\ns_lshl_b32 s5, s5, 3\ns_bfe_u32 s6, s2, 0x30003\ns_add_u32 s5, s5, s6\ns_lshl_b32 s5, s5, 5")
        g("s_lshr_b32 s22, s2, 6\ns_lshl_b32 s7, s22, 7\ns_lshl_b32 s6, s4, 5\ns_add_u32 s7, s7, s6")
    if final: g("s_and_b32 s5, s2, 7\ns_lshl_b32 s5, s5, 2\ns_bfe_u32 s6, s2, 0x20003\ns_add_u32 s5, s5, s6\ns_lshl_b32 s5, s5, 6\ns_and_b32 s6, s4, 1\ns_lshl_b32 s6, s6, 5\ns_add_u32 s5, s5, s6")
    if final: g("s_lshr_b32 s7, s2, 5\ns_lshl_b32 s7, s7, 6\ns_lshr_b32 s6, s4, 1\ns_lshl_b32 s6, s6, 5\ns_add_u32 s7, s7, s6")
    g(f"s_lshl_b32 s16, s7, 10\ns_add_u32 s16, s16, {WOT}\ns_lshl_b32 s17, s5, 10\ns_add_u32 s17, s17, {OB}\ns_add_u32 s18, s16, 16384\ns_add_u32 s19, s17, 16384\ns_waitcnt lgkmcnt(0)")
    g("v_lshlrev_b32 v5, 4, v2")
    for k in range(16):
        o=(k&3)*1024
        g(f"buffer_load_dwordx4 v[{16+4*k}:{19+4*k}], v5, s[8:11], s17 offen offset:{o}")
        g(f"buffer_load_dwordx4 a[{4*k}:{3+4*k}], v5, s[8:11], s16 offen offset:{o}")
        g(f"buffer_load_dwordx4 v[{80+4*k}:{83+4*k}], v5, s[8:11], s19 offen offset:{o}")
        g(f"buffer_load_dwordx4 a[{64+4*k}:{67+4*k}], v5, s[8:11], s18 offen offset:{o}")
        if k&3==3: g("v_add_u32 v5, 4096, v5")
    g(f"v_lshlrev_b32 v8, 14, v4\nv_lshl_add_u32 v8, v3, 1, v8\ns_lshl_b32 s20, s7, 12\ns_lshl_b32 s21, s5, 1\ns_add_u32 s20, s20, s21\ns_add_u32 s21, s20, {xout}\ns_add_u32 s20, s20, {xres}\nv_mov_b32 v7, v8")
    for rt in range(2):
        for r in range(4):
            for tt in range(2): g(f"buffer_load_ushort v{144+8*rt+4*tt+r}, v8, s[8:11], s20 offen offset:{tt*32}")
            g(f"v_add_u32 v8, {4096 if r<3 else 65536-3*4096}, v8")
    for r in range(160,176): g(f"v_mov_b32 v{r}, 0")
    for k in range(16):
        g(f"s_waitcnt vmcnt({min(63,76-4*k)})")
        for rt in range(2):
            for tt in range(2):
                d=160+8*rt+4*tt
                g(f"v_mfma_f32_16x16x32_bf16 v[{d}:{d+3}], a[{64*rt+4*k}:{64*rt+4*k+3}], v[{16+64*tt+4*k}:{19+64*tt+4*k}], v[{d}:{d+3}]")
    g("v_add_u32 v8, s5, v3\nv_lshlrev_b32 v8, 10, v8\nv_lshl_add_u32 v8, v4, 3, v8\nv_add_u32 v9, 16384, v8\ns_lshl_b32 s16, s7, 1")
    g("s_nop 7\ns_waitcnt vmcnt(0)")
    for i in range(16):
        bfr(g,160+i,160+i)
        g(f"v_lshlrev_b32 v{144+i}, 16, v{144+i}\nv_add_f32 v{160+i}, v{160+i}, v{144+i}")
    if not final:
        for r in range(10,14): g(f"v_mov_b32 v{r}, 0")
        for rt in range(2):
            for r in range(4):
                for tt in range(2):
                    i=160+8*rt+4*tt+r; e=14+tt
                    g(f"v_cvt_pk_bf16_f32 v{e}, v{i}, v{i}\nbuffer_store_short v{e}, v7, s[8:11], s21 offen offset:{tt*32}\nv_lshlrev_b32 v{e+2}, 16, v{e}\nv_add_f32 v{10+2*tt}, v{10+2*tt}, v{e+2}\nv_fmac_f32 v{11+2*tt}, v{e+2}, v{e+2}")
                g(f"v_add_u32 v7, {4096 if r<3 else 65536-3*4096}, v7")
        g("v_lshlrev_b32 v9, 4, v0\nds_write_b128 v9, v[10:13]\ns_waitcnt lgkmcnt(0)\ns_barrier\ns_cmp_lg_u32 s4, 0\ns_cbranch_scc1 L_end_"+name)
        g("v_and_b32 v9, 1, v4\nv_lshlrev_b32 v9, 3, v9\nv_lshl_add_u32 v9, v3, 4, v9")
        for i in range(16): g(f"ds_read_b64 v[{16+2*i}:{17+2*i}], v9 offset:{i*256}")
        g("s_waitcnt lgkmcnt(0)")
        for i in range(1,16): g(f"v_pk_add_f32 v[16:17], v[16:17], v[{16+2*i}:{17+2*i}]")
        g("v_bfe_u32 v12, v2, 1, 2\nv_lshlrev_b32 v12, 12, v12\nv_lshrrev_b32 v13, 3, v2\nv_lshl_add_u32 v12, v13, 4, v12\nv_and_b32 v13, 1, v2\nv_lshl_add_u32 v12, v13, 3, v12")
        g(f"s_lshl_b32 s16, s22, 14\ns_lshl_b32 s17, s5, 1\ns_add_u32 s16, s16, s17\ns_add_u32 s16, s16, {stats}\nv_cmp_gt_u32 vcc, 32, v2\ns_and_saveexec_b64 s[30:31], vcc\nbuffer_store_dwordx2 v[16:17], v12, s[8:11], s16 offen")
    if final:
      for rt in range(2):
          for tt in range(2):
              d=160+8*rt+4*tt; e=10+2*tt
              g(f"v_cvt_pk_bf16_f32 v{e}, v{d}, v{d+1}\nv_cvt_pk_bf16_f32 v{e+1}, v{d+2}, v{d+3}\nbuffer_store_dwordx2 v[{e}:{e+1}], v{8+tt}, s[12:15], s16 offen offset:{rt*32}\ns_nop 0")
    g.lab("L_end_"+name); g("s_endpgm")
    g.o.append(kdesc(name,176,128))

def build():
    hdr=open('interleave_layers__ssm_conv_s4__sliding_block__prompt.s.ref').read().split('; Override')[0]
    L=[("prep_kernel",640,256,34816),("conv1_kernel",512,256,52800),("qkv1_kernel",256,256,65536),("attn_kernel",512,256,0),("oproj1_kernel",256,256,4096),
       ("conv2_kernel",512,256,52800),("qkv2_kernel",256,256,65536),("attn_kernel",512,256,0),("oproj2_kernel",256,256,0)]
    s=hdr+''.join(f"; @launch kernel={n} grid=({gx},1,1) block=({b},1,1) lds={l}\n" for n,gx,b,l in L)
    s+='.amdgcn_target "amdgcn-amd-amdhsa--gfx950"\n.text\n'
    g=G(); prep(g); conv(g,"conv1_kernel",XT[0],XT[1],STATS[0],1); conv(g,"conv2_kernel",XT[2],XT[3],STATS[1],4)
    qkv(g,"qkv1_kernel",XT[1]); qkv(g,"qkv2_kernel",XT[3]); attn(g)
    oprojf(g,"oproj1_kernel",XT[1],False,XT[2],STATS[1]); oprojf(g,"oproj2_kernel",XT[3])
    import re
    for l in g.o:
        m=re.search(r'buffer_.*offset:(\d+)',l)
        assert not m or int(m.group(1))<4096, l
        m=re.search(r'ds_.*offset:(\d+)',l)
        assert not m or int(m.group(1))<65536, l
    open(os.environ.get('OUT','interleave_layers__ssm_conv_s4__sliding_block__prompt.s'),'w').write(s+'\n'.join(g.o)+'\n')
if __name__=="__main__": build()
```

```python
import os
VAR=set(os.environ.get('VAR','').split(','))
MB=1<<20
XT=[0,2*MB,4*MB,6*MB]; STATS=[8*MB,8*MB+65536]; KBUF=9*MB; WQT=13*MB; WOT=15*MB
QB=16*MB; KB=18*MB; VT=20*MB; OB=22*MB; WSZ=24*MB
class G:
    def __init__(s): s.o=[]
    def __call__(s,x):
        for l in x.strip('\n').split('\n'):
            if 'kA' in VAR and 'v_mfma' in l: continue
            if 'kB' in VAR and l.strip().startswith('ds_'): continue
            if 'qw' in VAR and 'buffer_load_dwordx4 a[' in l: continue
            if 'kC' in VAR and 'exec' in l: continue
            if 'buffer_store' in l:
                if 'wt' in VAR: l=l.rstrip()+' sc0 sc1'
                if 'nt' in VAR: l=l.rstrip()+' nt'
                if 'w1' in VAR: l=l.rstrip()+' sc1'
            s.o.append('    '+l.strip())
    def lab(s,l): s.o.append(l+':')
def stage(g,n):
    if f's{n}' in VAR: g('s_waitcnt vmcnt(0) lgkmcnt(0)\ns_endpgm')
def tm(g,w,i):
    if 'tm'+w not in VAR: return
    if i==0: g("v_readfirstlane_b32 s86, v0\ns_lshr_b32 s86, s86, 6")
    g(f"s_memtime s[{64+2*i}:{65+2*i}]")
def tmout(g,w):
    if 'tm'+w not in VAR: return
    g("s_mov_b64 exec, -1\ns_waitcnt vmcnt(0) lgkmcnt(0)\ns_memtime s[82:83]\ns_waitcnt lgkmcnt(0)")
    g(f"s_lshl_b32 s84, s2, 2\ns_add_u32 s84, s84, s86\ns_lshl_b32 s84, s84, 6\ns_add_u32 s84, s84, {8*MB+262144}\nv_mov_b32 v1, 0")
    for i in range(10): g(f"s_sub_u32 s85, s{64+2*i}, s64\nv_mov_b32 v2, s85\nbuffer_store_dword v2, v1, s[8:11], s84 offen offset:{4*i}")
def srd(g,d,slot,nbytes):
    g(f"s_load_dwordx2 s[{d}:{d+1}], s[0:1], {slot*8}")
    g(f"s_mov_b32 s{d+2}, {nbytes}\ns_mov_b32 s{d+3}, 0x00020000")
def khead(g,name):
    g.o.append(f".globl {name}\n.p2align 8\n.type {name},@function\n{name}:")
    if 'empty' in VAR: g("s_endpgm")
def kdesc(name,vg,ag=0):
    acc=(vg+3)//4*4
    tot=acc+ag if ag else vg
    return f""".section .rodata,"a"
.p2align 6
.amdhsa_kernel {name}
  .amdhsa_next_free_vgpr {tot}
  .amdhsa_next_free_sgpr 96
  .amdhsa_accum_offset {acc}
  .amdhsa_group_segment_fixed_size 0
  .amdhsa_kernarg_size 120
  .amdhsa_user_sgpr_count 2
  .amdhsa_user_sgpr_kernarg_segment_ptr 1
  .amdhsa_system_sgpr_workgroup_id_x 1
.end_amdhsa_kernel
.text
"""
def transp8(g,inb,outb,slo,shi):
    for c in range(8):
        for j in range(4):
            g(f"v_perm_b32 v{outb+4*c+j}, v{inb+4*(2*j+1)+(c>>1)}, v{inb+4*(2*j)+(c>>1)}, s{shi if c&1 else slo}")
def cexp(g,dr,di,ar,ai,L,t0,t1,sl2e,s2pi,sL):
    g(f"s_cmp_eq_u32 s29, 0\ns_mov_b32 s{sL}, {float(L[0])!r}\ns_mov_b32 s31, {float(L[1])!r}\ns_cselect_b32 s{sL}, s{sL}, s31")
    g(f"v_mul_f32 v{t0}, s{sL}, v{ar}\nv_mul_f32 v{t1}, s{sL}, v{ai}")
    g(f"v_mul_f32 v{t0}, s{sl2e}, v{t0}\nv_mul_f32 v{t1}, s{s2pi}, v{t1}")
    g(f"v_exp_f32 v{t0}, v{t0}\nv_fract_f32 v{t1}, v{t1}\ns_nop 0")
    g(f"v_cos_f32 v{dr}, v{t1}\nv_sin_f32 v{di}, v{t1}\ns_nop 0")
    g(f"v_mul_f32 v{dr}, v{dr}, v{t0}\nv_mul_f32 v{di}, v{di}, v{t0}")
def cmul(g,dr,di,ar,ai,br,bi,t):
    g(f"v_mul_f32 v{t}, v{ai}, v{bi}\nv_mul_f32 v{t+1}, v{ai}, v{br}")
    g(f"v_fma_f32 v{t}, v{ar}, v{br}, -v{t}\nv_fma_f32 v{di}, v{ar}, v{bi}, v{t+1}\nv_mov_b32 v{dr}, v{t}")

def prep(g):
    khead(g,"prep_kernel")
    srd(g,8,14,WSZ)
    g("s_mov_b32 s20, 0x05040100\ns_mov_b32 s21, 0x07060302")
    tm(g,'p',0)
    g("v_lshrrev_b32 v1, 6, v0\nv_and_b32 v2, 63, v0")
    g("s_cmp_lt_u32 s2, 512\ns_cbranch_scc1 L_kgen")
    g("s_cmp_lt_u32 s2, 576\ns_cbranch_scc1 L_xt")
    g("s_cmp_lt_u32 s2, 640\ns_cbranch_scc0 L_prep_end")
    g("s_sub_u32 s3, s2, 576\ns_cmp_lt_u32 s3, 48\ns_cbranch_scc0 L_wo")
    srd(g,12,10,512*1536*2)
    g(f"s_mov_b32 s22, 3072\ns_mov_b32 s23, {WQT}\ns_mul_i32 s24, s3, 21846\ns_lshr_b32 s24, s24, 16")
    g("s_lshr_b32 s24, s24, 2\ns_mul_i32 s25, s24, 12\ns_sub_u32 s25, s3, s25\ns_branch L_wt")
    g.lab("L_wo")
    srd(g,12,11,512*512*2)
    g(f"s_sub_u32 s3, s3, 48\ns_mov_b32 s22, 1024\ns_mov_b32 s23, {WOT}\ns_lshr_b32 s24, s3, 2\ns_and_b32 s25, s3, 3")
    g.lab("L_wt")
    if 'pw' in VAR: g("s_endpgm")
    g("s_waitcnt lgkmcnt(0)")
    g("v_and_b32 v3, 15, v0\nv_lshrrev_b32 v4, 4, v0")
    g("s_lshl_b32 s26, s24, 7\ns_lshl_b32 s27, s25, 7")
    g("v_lshlrev_b32 v5, 3, v4\nv_add_u32 v5, s26, v5")
    g("v_lshlrev_b32 v6, 3, v3\nv_add_u32 v6, s27, v6")
    g("v_mul_lo_u32 v7, v5, s22\nv_lshl_add_u32 v7, v6, 1, v7")
    for i in range(8):
        g(f"buffer_load_dwordx4 v[{16+4*i}:{19+4*i}], v7, s[12:15], 0 offen\nv_add_u32 v7, s22, v7")
    g("v_lshrrev_b32 v8, 4, v6\nv_lshlrev_b32 v8, 4, v8\nv_lshrrev_b32 v9, 5, v5\nv_add_u32 v8, v8, v9\nv_lshlrev_b32 v8, 10, v8\nv_bfe_u32 v9, v5, 3, 2\nv_lshlrev_b32 v9, 4, v9\nv_and_b32 v10, 15, v6\nv_add_u32 v9, v9, v10\nv_lshl_add_u32 v8, v9, 4, v8\ns_waitcnt vmcnt(0)")
    transp8(g,16,48,20,21)
    for c in range(8):
        g(f"buffer_store_dwordx4 v[{48+4*c}:{51+4*c}], v8, s[8:11], s23 offen offset:{c*16}")
    g("s_branch L_prep_end")
    g.lab("L_xt")
    if 'px' in VAR: g("s_endpgm")
    srd(g,12,0,2048*512*2)
    g("s_sub_u32 s3, s2, 512\ns_lshl_b32 s3, s3, 5\ns_waitcnt lgkmcnt(0)")
    g("v_lshlrev_b32 v3, 3, v1\nv_add_u32 v3, s3, v3")
    g("v_lshlrev_b32 v4, 10, v3\nv_lshl_add_u32 v4, v2, 4, v4")
    for i in range(8):
        if i==4: g("v_add_u32 v4, 4096, v4")
        g(f"buffer_load_dwordx4 v[{16+4*i}:{19+4*i}], v4, s[12:15], 0 offen offset:{(i&3)*1024}")
    g("v_lshlrev_b32 v5, 15, v2\nv_lshl_add_u32 v5, v3, 1, v5\ns_waitcnt vmcnt(0)")
    transp8(g,16,48,20,21)
    for c in range(8):
        g(f"buffer_store_dwordx4 v[{48+4*c}:{51+4*c}], v5, s[8:11], 0 offen\nv_add_u32 v5, 4096, v5")
    for i in range(8):
        g(f"v_mov_b32 v{80+i}, 0\nv_mov_b32 v{88+i}, 0")
        for j in range(4):
            r=16+4*i+j
            g(f"v_lshlrev_b32 v6, 16, v{r}\nv_and_b32 v7, 0xffff0000, v{r}")
            g(f"v_add_f32 v{80+i}, v{80+i}, v6\nv_fmac_f32 v{88+i}, v6, v6\nv_add_f32 v{80+i}, v{80+i}, v7\nv_fmac_f32 v{88+i}, v7, v7")
    for md in ["row_shr:1 row_mask:0xf","row_shr:2 row_mask:0xf","row_shr:4 row_mask:0xf","row_shr:8 row_mask:0xf","row_bcast:15 row_mask:0xa","row_bcast:31 row_mask:0xc"]:
        for i in range(16):
            g(f"v_add_f32_dpp v{80+i}, v{80+i}, v{80+i} {md} bank_mask:0xf bound_ctrl:0")
    g("v_lshlrev_b32 v5, 1, v3\nv_mov_b32 v8, 0\nv_mov_b32 v9, 0\nv_cmp_eq_u32 vcc, 63, v2\ns_and_saveexec_b64 s[30:31], vcc")
    g(f"s_mov_b32 s23, {STATS[0]}")
    for i in range(8):
        g(f"v_mov_b32 v6, v{80+i}\nv_mov_b32 v7, v{88+i}")
        g(f"buffer_store_dwordx2 v[6:7], v5, s[8:11], s23 offen offset:{(i&1)*8}")
        g("s_nop 1")
        if i&1: g("v_add_u32 v5, 4096, v5")
    g("s_branch L_prep_end")
    g.lab("L_kgen")
    if 'pk' in VAR: g("s_endpgm")
    for k in range(6): srd(g,32+4*k,1+k,512*128*2)
    srd(g,56,7,1024)
    g("s_mov_b32 s24, 0x3fb8aa3b\ns_mov_b32 s25, 0x3e22f983")
    g("s_and_b32 s29, s2, 1\ns_andn2_b32 s30, s2, 1\nv_lshrrev_b32 v3, 1, v1\nv_add_u32 v3, s30, v3")
    g("v_and_b32 v4, 1, v1\nv_lshl_add_u32 v5, v4, 6, v2")
    g("v_lshl_add_u32 v6, v3, 7, v5\nv_lshlrev_b32 v6, 1, v6\nv_lshlrev_b32 v7, 1, v3\ns_waitcnt lgkmcnt(0)")
    for k in range(6): g(f"buffer_load_ushort v{10+k}, v6, s[{32+4*k}:{35+4*k}], 0 offen")
    g("buffer_load_ushort v16, v7, s[56:59], 0 offen\ns_waitcnt vmcnt(0)")
    if 'k1' in VAR: g("s_endpgm")
    tm(g,'p',1)
    for k in range(7): g(f"v_lshlrev_b32 v{10+k}, 16, v{10+k}")
    g("v_mul_f32 v16, s24, v16\nv_exp_f32 v16, v16\ns_nop 0\nv_cvt_pk_bf16_f32 v16, v16, v16\nv_lshlrev_b32 v16, 16, v16")
    g("v_mul_f32 v10, v16, v10\nv_mul_f32 v11, v16, v11\nv_mul_f32 v12, v16, v12\nv_mul_f32 v13, v16, v13")
    cmul(g,17,18,14,15,12,13,20)
    g("s_mov_b32 s26, 8704\nv_mul_lo_u32 v8, v1, s26\nv_lshl_add_u32 v9, v2, 3, v8")
    g("v_and_b32 v22, 15, v2\nv_lshrrev_b32 v23, 4, v2\ns_mov_b32 s26, 528\nv_mul_lo_u32 v24, v22, s26\nv_lshl_add_u32 v24, v23, 4, v24\nv_add_u32 v24, v8, v24")
    for R,(base,st) in enumerate([((0,512),(1,4)),((256,1024),(2,8))]):
        cexp(g,30,31,10,11,st,20,21,24,25,26)
        cexp(g,32,33,10,11,(16*st[0],16*st[1]),20,21,24,25,26)
        if True:
            cexp(g,36,37,10,11,base,20,21,24,25,26)
            cmul(g,34,35,17,18,36,37,20)
        g("v_mov_b32 v50, 1.0\nv_mov_b32 v51, 0\nv_mov_b32 v48, v34\nv_sub_f32 v49, 0, v35\nv_sub_f32 v33, 0, v33")
        for r in range(15):
            for (o,m,t) in ((48,32,20),(50,30,22)):
                a0=o+4*r
                g(f"v_pk_mul_f32 v[{t}:{t+1}], v[{a0}:{a0+1}], v[{m}:{m+1}] op_sel:[0,0] op_sel_hi:[0,1]")
            for (o,m,t) in ((48,32,20),(50,30,22)):
                a0=o+4*r
                g(f"v_pk_fma_f32 v[{a0+4}:{a0+5}], v[{a0}:{a0+1}], v[{m}:{m+1}], v[{t}:{t+1}] op_sel:[1,1,0] op_sel_hi:[1,0,1] neg_lo:[1,0,0]")
        for q in range(32):
            x=48+2*q; t=36+2*(q&1)
            g(f"v_cvt_pk_bf16_f32 v{40+(q&1)}, v{x}, v{x+1}\nv_lshlrev_b32 v{t}, 16, v{40+(q&1)}\nv_and_b32 v{t+1}, 0xffff0000, v{40+(q&1)}")
            g(f"v_pk_add_f32 v[{t}:{t+1}], v[{x}:{x+1}], v[{t}:{t+1}] neg_lo:[0,1] neg_hi:[0,1]\nv_mov_b32 v{x}, v{40+(q&1)}\nv_cvt_pk_bf16_f32 v{x+1}, v{t}, v{t+1}")
        if 'k3' in VAR: g("s_endpgm")
        tm(g,'p',2+2*R)
        a=144+4*R
        g(f"v_mov_b32 v{a}, 0\nv_mov_b32 v{a+1}, 0\nv_mov_b32 v{a+2}, 0\nv_mov_b32 v{a+3}, 0")
        for ph in range(2):
            for r in range(16):
                g(f"ds_write_b64 v9, v[{48+4*r+2*ph}:{49+4*r+2*ph}] offset:{r*528}")
            g("s_waitcnt lgkmcnt(0)")
            for S in range(8):
                b=(112 if ph==0 else 48)+4*S
                g(f"ds_read_b128 v[{b}:{b+3}], v24 offset:{S*64}")
            if ph==0: g("s_waitcnt lgkmcnt(0)")
        for S in range(8):
            A=112+4*S; B=48+4*S; w=152+4*(S&1)
            g(f"v_mov_b32 v{w}, v{A+1}\nv_mov_b32 v{w+1}, v{A}\nv_mov_b32 v{w+2}, v{A+3}\nv_mov_b32 v{w+3}, v{A+2}\ns_waitcnt lgkmcnt({7-S})")
            g(f"v_mfma_f32_16x16x32_bf16 v[{a}:{a+3}], v[{A}:{A+3}], v[{B}:{B+3}], v[{a}:{a+3}]\ns_nop 1")
            g(f"v_mfma_f32_16x16x32_bf16 v[{a}:{a+3}], v[{w}:{w+3}], v[{B}:{B+3}], v[{a}:{a+3}]")
        tm(g,'p',3+2*R)
    if 'k2' in VAR: g("s_endpgm")
    g("s_nop 7\ns_nop 3\nv_and_b32 v22, 15, v2\nv_lshrrev_b32 v23, 4, v2\nv_lshlrev_b32 v25, 8, v23\nv_lshl_add_u32 v25, v22, 2, v25\nv_add_u32 v25, v8, v25")
    for R in range(2):
        for r in range(4): g(f"ds_write_b32 v25, v{144+4*R+r} offset:{R*1024+r*64}")
    g("s_waitcnt lgkmcnt(0)\ns_barrier")
    tm(g,'p',6); tm(g,'p',7); tm(g,'p',8)
    g("v_and_b32 v26, 2, v1\ns_mov_b32 s26, 8704\nv_mul_lo_u32 v26, v26, s26\ns_mov_b32 s27, 0x7fff\ns_mov_b32 s28, 128")
    g("s_lshl_b32 s30, s29, 1\ns_add_u32 s31, s30, 1\ns_cmp_eq_u32 s29, 0\ns_cselect_b32 s22, 63, 127\ns_lshl_b32 s23, s29, 6\nv_and_b32 v30, s22, v5\nv_add_u32 v30, s23, v30")
    for ps in range(2):
        if ps==1: g("s_cmp_eq_u32 s29, 0\ns_cbranch_scc1 L_prep_end\nv_and_b32 v30, 63, v5\nv_add_u32 v30, 192, v30")
        g("v_lshlrev_b32 v27, 3, v30\nv_or_b32 v27, 128, v27\nv_ffbh_u32 v27, v27\nv_sub_u32 v28, 24, v27")
        g("v_subrev_u32 v29, s30, v28\nv_lshl_add_u32 v29, v29, 10, v26\nv_min_u32 v27, 1, v28\nv_lshlrev_b32 v27, 9, v27\nv_sub_u32 v29, v29, v27")
        g("v_lshlrev_b32 v31, v28, 1\nv_add_u32 v31, -1, v31\nv_add_u32 v28, 1, v28\nv_lshlrev_b32 v32, 4, v30")
        for e in range(8):
            g(f"v_add_u32 v27, {2*e}, v32\nv_bfe_u32 v33, v27, v28, 1\nv_add3_u32 v27, v27, v31, v33\nv_lshrrev_b32 v27, v28, v27\nv_lshl_add_u32 v27, v27, 2, v29")
            g(f"ds_read_b32 v{40+e}, v27\nds_read_b32 v{56+e}, v27 offset:8704")
        g("s_waitcnt lgkmcnt(0)")
        for e in range(8): g(f"v_add_f32 v{40+e}, v{40+e}, v{56+e}")
        for j in range(4):
            e0=7-2*j; e1=e0-1
            g(f"v_cvt_pk_bf16_f32 v{72+j}, v{40+e0}, v{40+e1}")
        g(f"v_lshlrev_b32 v27, 13, v3\nv_lshl_add_u32 v27, v30, 4, v27\ns_mov_b32 s23, {KBUF}")
        g("buffer_store_dwordx4 v[72:75], v27, s[8:11], s23 offen\ns_nop 1")
    g.lab("L_prep_end")
    if 'tmp' in VAR: g("s_cmp_lt_u32 s2, 640\ns_cbranch_scc0 L_pe2")
    tmout(g,'p')
    g.lab("L_pe2")
    g("s_endpgm")
    g.o.append(kdesc("prep_kernel",160))
```

```python
from gen3 import *
def oproj(g,name,xres,xout,stats,final):
    khead(g,name)
    g("s_cmp_ge_u32 s2, 256\ns_cbranch_scc1 L_end_"+name)
    srd(g,8,14,WSZ)
    if final: srd(g,12,12,2048*512*2)
    tm(g,'o',0)
    g("v_lshrrev_b32 v1, 6, v0\nv_and_b32 v2, 63, v0\nv_and_b32 v3, 15, v2\nv_lshrrev_b32 v4, 4, v2\ns_nop 0\nv_readfirstlane_b32 s4, v1")
    g("s_lshr_b32 s5, s2, 1\ns_lshl_b32 s5, s5, 4\ns_and_b32 s6, s2, 1\ns_lshl_b32 s7, s6, 8\ns_lshl_b32 s16, s4, 6\ns_add_u32 s7, s7, s16")
    g(f"s_lshl_b32 s16, s7, 10\ns_add_u32 s16, s16, {WOT}\ns_lshl_b32 s17, s5, 10\ns_add_u32 s17, s17, {OB}\ns_waitcnt lgkmcnt(0)")
    g("v_lshlrev_b32 v5, 4, v2")
    for k in range(16):
        g(f"buffer_load_dwordx4 v[{16+4*k}:{19+4*k}], v5, s[8:11], s17 offen offset:{(k&3)*1024}")
        if k&3==3: g("v_add_u32 v5, 4096, v5")
    g("v_mov_b32 v6, v5")
    if True:
        g("v_lshlrev_b32 v6, 4, v2")
        for i in range(64):
            g(f"buffer_load_dwordx4 a[{4*i}:{4*i+3}], v6, s[8:11], s16 offen offset:{(i&3)*1024}")
            if i&3==3: g("v_add_u32 v6, 4096, v6")
    for rt in range(0):
        for k in range(16):
            a=(rt*16+k)*4
            g(f"buffer_load_dwordx4 a[{a}:{a+3}], v6, s[8:11], s16 offen offset:{k*64}")
        g("v_add_u32 v6, 16384, v6")
    g(f"v_lshlrev_b32 v7, 14, v4\nv_lshl_add_u32 v7, v3, 1, v7\ns_lshl_b32 s18, s7, 12\ns_lshl_b32 s19, s5, 1\ns_add_u32 s18, s18, s19\ns_add_u32 s19, s18, {xout}\ns_add_u32 s18, s18, {xres}\nv_mov_b32 v8, v7")
    for rt in range(4):
        for r in range(4):
            g(f"buffer_load_ushort v{96+4*rt+r}, v8, s[8:11], s18 offen\nv_add_u32 v8, {4096 if r<3 else 65536-3*4096}, v8")
    stage(g,1)
    tm(g,'o',1)
    for r in range(80,96): g(f"v_mov_b32 v{r}, 0")
    for rt in range(4):
        g(f"s_waitcnt vmcnt({min(63,16+48-16*rt)})")
        tm(g,'o',2+rt)
        for k in range(16):
            if 'noloop' in VAR and k>0: continue
            a=(rt*16+k)*4
            g(f"v_mfma_f32_16x16x32_bf16 v[{80+4*rt}:{83+4*rt}], a[{a}:{a+3}], v[{16+4*k}:{19+4*k}], v[{80+4*rt}:{83+4*rt}]")
    stage(g,3)
    g("s_nop 7\ns_waitcnt vmcnt(0)")
    tm(g,'o',6)
    for i in range(16):
        bfr(g,80+i,80+i)
        g(f"v_lshlrev_b32 v{96+i}, 16, v{96+i}\nv_add_f32 v{80+i}, v{80+i}, v{96+i}")
    if final:
        g("v_add_u32 v8, s5, v3\nv_lshlrev_b32 v8, 10, v8\nv_lshl_add_u32 v8, v4, 3, v8\ns_lshl_b32 s16, s7, 1")
        for rt in range(4):
            g(f"v_cvt_pk_bf16_f32 v10, v{80+4*rt}, v{81+4*rt}\nv_cvt_pk_bf16_f32 v11, v{82+4*rt}, v{83+4*rt}\nbuffer_store_dwordx2 v[10:11], v8, s[12:15], s16 offen offset:{rt*32}\ns_nop 0")
    else:
        g("v_mov_b32 v10, 0\nv_mov_b32 v11, 0")
        for rt in range(4):
            for r in range(4):
                i=80+4*rt+r
                g(f"v_cvt_pk_bf16_f32 v12, v{i}, v{i}\nbuffer_store_short v12, v7, s[8:11], s19 offen\nv_add_u32 v7, {4096 if r<3 else 65536-3*4096}, v7\nv_lshlrev_b32 v13, 16, v12\nv_add_f32 v10, v10, v13\nv_fmac_f32 v11, v13, v13")
        tm(g,'o',7); tm(g,'o',8); tmout(g,'o')
        g("v_lshlrev_b32 v12, 3, v0\nds_write_b64 v12, v[10:11]\ns_waitcnt lgkmcnt(0)\ns_barrier\ns_cmp_lg_u32 s4, 0\ns_cbranch_scc1 L_end_"+name)
        g("v_lshlrev_b32 v12, 3, v3")
        for i in range(16): g(f"ds_read_b64 v[{16+2*i}:{17+2*i}], v12 offset:{i*128}")
        g("s_waitcnt lgkmcnt(0)")
        for i in range(1,16): g(f"v_add_f32 v16, v16, v{16+2*i}\nv_add_f32 v17, v17, v{17+2*i}")
        g("v_bfe_u32 v12, v3, 1, 2\nv_lshlrev_b32 v12, 12, v12\nv_lshrrev_b32 v13, 3, v3\nv_lshl_add_u32 v12, v13, 4, v12\nv_and_b32 v13, 1, v3\nv_lshl_add_u32 v12, v13, 3, v12")
        g(f"s_lshl_b32 s16, s6, 14\ns_lshl_b32 s17, s5, 1\ns_add_u32 s16, s16, s17\ns_add_u32 s16, s16, {stats}\nv_cmp_gt_u32 vcc, 16, v2\ns_and_saveexec_b64 s[30:31], vcc\nbuffer_store_dwordx2 v[16:17], v12, s[8:11], s16 offen")
    g.lab("L_end_"+name); g("s_endpgm")
    g.o.append(kdesc(name,112,256))

def oprojf(g,name,xres,final=True,xout=0,stats=0):
    khead(g,name)
    g("s_cmp_ge_u32 s2, 256\ns_cbranch_scc1 L_end_"+name)
    srd(g,8,14,WSZ)
    if final: srd(g,12,12,2048*512*2)
    W='f' if final else 'g'
    tm(g,W,0)
    g("v_lshrrev_b32 v1, 6, v0\nv_and_b32 v2, 63, v0\nv_and_b32 v3, 15, v2\nv_lshrrev_b32 v4, 4, v2\ns_nop 0\nv_readfirstlane_b32 s4, v1")
    if not final:
        g("s_and_b32 s5, s2, 7\ns_lshl_b32 s5, s5, 3\ns_bfe_u32 s6, s2, 0x30003\ns_add_u32 s5, s5, s6\ns_lshl_b32 s5, s5, 5")
        g("s_lshr_b32 s22, s2, 6\ns_lshl_b32 s7, s22, 7\ns_lshl_b32 s6, s4, 5\ns_add_u32 s7, s7, s6")
    if final: g("s_and_b32 s5, s2, 7\ns_lshl_b32 s5, s5, 2\ns_bfe_u32 s6, s2, 0x20003\ns_add_u32 s5, s5, s6\ns_lshl_b32 s5, s5, 6\ns_and_b32 s6, s4, 1\ns_lshl_b32 s6, s6, 5\ns_add_u32 s5, s5, s6")
    if final: g("s_lshr_b32 s7, s2, 5\ns_lshl_b32 s7, s7, 6\ns_lshr_b32 s6, s4, 1\ns_lshl_b32 s6, s6, 5\ns_add_u32 s7, s7, s6")
    g(f"s_lshl_b32 s16, s7, 10\ns_add_u32 s16, s16, {WOT}\ns_lshl_b32 s17, s5, 10\ns_add_u32 s17, s17, {OB}\ns_add_u32 s18, s16, 16384\ns_add_u32 s19, s17, 16384\ns_waitcnt lgkmcnt(0)")
    g("v_lshlrev_b32 v5, 4, v2")
    D=int(os.environ.get('OD','6'))
    def ld(k):
        o=(k&3)*1024
        g(f"buffer_load_dwordx4 v[{16+4*k}:{19+4*k}], v5, s[8:11], s17 offen offset:{o}")
        g(f"buffer_load_dwordx4 a[{4*k}:{3+4*k}], v5, s[8:11], s16 offen offset:{o}")
        g(f"buffer_load_dwordx4 v[{80+4*k}:{83+4*k}], v5, s[8:11], s19 offen offset:{o}")
        g(f"buffer_load_dwordx4 a[{64+4*k}:{67+4*k}], v5, s[8:11], s18 offen offset:{o}")
        if k&3==3: g("v_add_u32 v5, 4096, v5")
        if k<15: return
        for rt in range(2):
            for r in range(4):
                for tt in range(2): g(f"buffer_load_ushort v{144+8*rt+4*tt+r}, v8, s[8:11], s20 offen offset:{tt*32}")
                g(f"v_add_u32 v8, {4096 if r<3 else 65536-3*4096}, v8")
    g(f"v_lshlrev_b32 v8, 14, v4\nv_lshl_add_u32 v8, v3, 1, v8\ns_lshl_b32 s20, s7, 12\ns_lshl_b32 s21, s5, 1\ns_add_u32 s20, s20, s21\ns_add_u32 s21, s20, {xout}\ns_add_u32 s20, s20, {xres}\nv_mov_b32 v7, v8")
    for k in range(D): ld(k)
    tm(g,W,1)
    for k in range(16):
        if k+D<16: ld(k+D)
        g(f"s_waitcnt vmcnt({4*(min(k+D,15)-k)+(16 if k+D>=15 else 0)})")
        if k in (0,5,10,15): tm(g,W,2+k//5)
        for rt in range(2):
            for tt in range(2):
                d=160+8*rt+4*tt
                g(f"v_mfma_f32_16x16x32_bf16 v[{d}:{d+3}], a[{64*rt+4*k}:{64*rt+4*k+3}], v[{16+64*tt+4*k}:{19+64*tt+4*k}], {f'v[{d}:{d+3}]' if k else '0'}")
    g("v_add_u32 v8, s5, v3\nv_lshlrev_b32 v8, 10, v8\nv_lshl_add_u32 v8, v4, 3, v8\nv_add_u32 v9, 16384, v8\ns_lshl_b32 s16, s7, 1")
    g("s_nop 7\ns_waitcnt vmcnt(0)")
    tm(g,W,6)
    for i in range(16):
        bfr(g,160+i,160+i)
        g(f"v_lshlrev_b32 v{144+i}, 16, v{144+i}\nv_add_f32 v{160+i}, v{160+i}, v{144+i}")
    if not final:
        for r in range(10,14): g(f"v_mov_b32 v{r}, 0")
        for rt in range(2):
            for r in range(4):
                for tt in range(2):
                    i=160+8*rt+4*tt+r; e=14+tt
                    g(f"v_cvt_pk_bf16_f32 v{e}, v{i}, v{i}\nbuffer_store_short v{e}, v7, s[8:11], s21 offen offset:{tt*32}\nv_lshlrev_b32 v{e+2}, 16, v{e}\nv_add_f32 v{10+2*tt}, v{10+2*tt}, v{e+2}\nv_fmac_f32 v{11+2*tt}, v{e+2}, v{e+2}")
                g(f"v_add_u32 v7, {4096 if r<3 else 65536-3*4096}, v7")
        tm(g,W,7); tm(g,W,8); tmout(g,W)
        g("v_lshlrev_b32 v9, 4, v0\nds_write_b128 v9, v[10:13]\ns_waitcnt lgkmcnt(0)\ns_barrier\ns_cmp_lg_u32 s4, 0\ns_cbranch_scc1 L_end_"+name)
        g("v_and_b32 v9, 1, v4\nv_lshlrev_b32 v9, 3, v9\nv_lshl_add_u32 v9, v3, 4, v9")
        for i in range(16): g(f"ds_read_b64 v[{16+2*i}:{17+2*i}], v9 offset:{i*256}")
        g("s_waitcnt lgkmcnt(0)")
        for i in range(1,16): g(f"v_pk_add_f32 v[16:17], v[16:17], v[{16+2*i}:{17+2*i}]")
        g("v_bfe_u32 v12, v2, 1, 2\nv_lshlrev_b32 v12, 12, v12\nv_lshrrev_b32 v13, 3, v2\nv_lshl_add_u32 v12, v13, 4, v12\nv_and_b32 v13, 1, v2\nv_lshl_add_u32 v12, v13, 3, v12")
        g(f"s_lshl_b32 s16, s22, 14\ns_lshl_b32 s17, s5, 1\ns_add_u32 s16, s16, s17\ns_add_u32 s16, s16, {stats}\nv_cmp_gt_u32 vcc, 32, v2\ns_and_saveexec_b64 s[30:31], vcc\nbuffer_store_dwordx2 v[16:17], v12, s[8:11], s16 offen")
    if final:
      for rt in range(2):
          for tt in range(2):
              d=160+8*rt+4*tt; e=10+2*tt
              g(f"v_cvt_pk_bf16_f32 v{e}, v{d}, v{d+1}\nv_cvt_pk_bf16_f32 v{e+1}, v{d+2}, v{d+3}\nbuffer_store_dwordx2 v[{e}:{e+1}], v{8+tt}, s[12:15], s16 offen offset:{rt*32}\ns_nop 0")
    if final: tm(g,W,7); tm(g,W,8); tmout(g,W)
    g.lab("L_end_"+name); g("s_endpgm")
    g.o.append(kdesc(name,176,128))

def build():
    hdr=open('interleave_layers__ssm_conv_s4__sliding_block__prompt.s.ref').read().split('; Override')[0]
    L=[("prep_kernel",640,256,34816),("conv1_kernel",512,256,52800),("qkv1_kernel",256,256,65536),("attn_kernel",512,256,0),("oproj1_kernel",256,256,4096),
       ("conv2_kernel",512,256,52800),("qkv2_kernel",256,256,65536),("attn_kernel",512,256,0),("oproj2_kernel",256,256,0)]
    s=hdr+''.join(f"; @launch kernel={n} grid=({gx},1,1) block=({b},1,1) lds={l}\n" for n,gx,b,l in L)
    s+='.amdgcn_target "amdgcn-amd-amdhsa--gfx950"\n.text\n'
    g=G(); prep(g); conv(g,"conv1_kernel",XT[0],XT[1],STATS[0],1); conv(g,"conv2_kernel",XT[2],XT[3],STATS[1],4)
    qkv(g,"qkv1_kernel",XT[1]); qkv(g,"qkv2_kernel",XT[3]); attn(g)
    oprojf(g,"oproj1_kernel",XT[1],False,XT[2],STATS[1]); oprojf(g,"oproj2_kernel",XT[3])
    import re
    for l in g.o:
        m=re.search(r'buffer_.*offset:(\d+)',l)
        assert not m or int(m.group(1))<4096, l
        m=re.search(r'ds_.*offset:(\d+)',l)
        assert not m or int(m.group(1))<65536, l
    open(os.environ.get('OUT','interleave_layers__ssm_conv_s4__sliding_block__prompt.s'),'w').write(s+'\n'.join(g.o)+'\n')
if __name__=="__main__": build()
```
